```python
import torch

def _softmax(x, axis=-1):
    return torch.softmax(x, dim=axis)
def _gelu(x):
    return torch.nn.functional.gelu(x, approximate="tanh")
def _silu(x):
    return torch.nn.functional.silu(x)
def _sigmoid(x):
    return torch.sigmoid(x)
def _layernorm(x, axis=-1, eps=1e-5):
    m = x.mean(dim=axis, keepdim=True)
    v = x.var(dim=axis, keepdim=True, unbiased=False)
    return (x - m) / torch.sqrt(v + eps)
def _scatter_add(tgt, idx, src, axis=0):
    return tgt.clone().index_add_(axis, idx, src)
def _segment_sum(src, seg, n):
    out = torch.zeros((n,) + src.shape[1:], dtype=src.dtype)
    return out.index_add_(0, seg, src)
def _pad(x, pw):
    flat = tuple(v for pair in reversed(pw) for v in pair)
    return torch.nn.functional.pad(x, flat)

kernel_name = 'standalone__gqa_block_cached__near_ridge'

def setup_inputs():

    _w = (lambda a: (lambda t: t.to(torch.bfloat16) if t.is_floating_point() else t)(torch.as_tensor(a)))
    B, Sq, D = 32, 32, 512
    Hq, Hkv, Sk, Dh = 32, 8, 512, 128
    assert Hq % Hkv == 0, (Hq, Hkv)
    return {
        "x": _w((lambda *s: torch.randn(*s, dtype=torch.bfloat16) * 0.8)(B, Sq, D)),
        "k_cache": _w((lambda *s: torch.randn(*s, dtype=torch.bfloat16) * 0.8)(B, Hkv, Sk, Dh)),
        "v_cache": _w((lambda *s: torch.randn(*s, dtype=torch.bfloat16) * 0.05)(B, Hkv, Sk, Dh)),
        "wq": _w((lambda *s: torch.randn(*s, dtype=torch.bfloat16) * 0.8)(D, Hq * Dh) * (D ** -0.5)),
        "wo": _w((lambda *s: torch.randn(*s, dtype=torch.bfloat16) * 0.05)(Hq * Dh, D) * ((Hq * Dh) ** -0.5)),
    }

def reference(x, k_cache, v_cache, wq, wo):
    B, Sq, D = x.shape
    Hq, Dh = 32, 128
    Hkv = k_cache.shape[1]
    rep = Hq // Hkv
    q = (lambda x, *d: x.permute(*d))((x @ wq).reshape(B, Sq, Hq, Dh), 0, 2, 1, 3)
    k = (lambda x, n, axis: torch.repeat_interleave(x, n, dim=axis))(k_cache, rep, axis=1)
    v = (lambda x, n, axis: torch.repeat_interleave(x, n, dim=axis))(v_cache, rep, axis=1)
    scores = torch.einsum("bhqd,bhkd->bhqk", q, k) * (Dh ** -0.5)
    p = _softmax(scores, axis=-1)
    o = torch.einsum("bhqk,bhkd->bhqd", p, v)
    return (lambda x, *d: x.permute(*d))(o, 0, 2, 1, 3).reshape(B, Sq, Hq * Dh) @ wo
```

```python
import sys, math

NAME = "standalone__gqa_block_cached__near_ridge"
OUT = sys.argv[1] if len(sys.argv) > 1 else f"cdna_kernels/{NAME}.s"

HEADER = """; Kernarg layout for this problem (64 bytes, ptrs only, base s[0:1]):
"""


def R(a, n=1):
    return set(range(a, a + n))


def I(x):
    return str(x)


def vr(a, n):
    return f"v{a}" if n == 1 else f"v[{a}:{a+n-1}]"


class Ins:
    __slots__ = ("kind", "wr", "rd", "a", "b", "c", "d", "ws")

    def __init__(self, kind, wr=None, rd=None, a=None, b=None, c=None, d=None):
        self.kind = kind
        self.wr = wr or set()
        self.rd = rd or set()
        self.a, self.b, self.c, self.d = a, b, c, d
        self.ws = 1


VALUISH = ("valu", "trans", "perm", "rfl")


def need(p, c):
    n = 0
    if p.kind == "mfma":
        pd = p.wr
        if c.kind == "mfma":
            if (c.a | c.b) & pd:
                n = max(n, 12)
            if c.c & pd:
                n = max(n, 0 if c.c == pd else 10)
            elif c.wr & pd:
                n = max(n, 10)
        elif c.kind in VALUISH:
            if (c.rd | c.wr) & pd:
                n = max(n, 12)
            if c.wr & p.c:
                n = max(n, 7)
        elif c.kind in ("dsr", "dsw", "vml", "vms"):
            if (c.rd | c.wr) & pd:
                n = max(n, 12)
    elif p.kind in VALUISH:
        if c.kind == "mfma" and (c.a | c.b | c.c) & p.wr:
            n = max(n, 2)
        if p.kind == "trans" and c.kind != "mfma" and (c.rd & p.wr):
            n = max(n, 1)
        if c.kind == "perm" and (c.rd & p.wr):
            n = max(n, 2)
        if c.kind == "rfl" and (c.rd & p.wr):
            n = max(n, 1)
    elif p.kind in ("vms", "dsw"):
        if c.kind in VALUISH and (c.wr & p.rd):
            n = max(n, 2)
    elif p.kind == "m0w":
        if c.kind == "dma":
            n = max(n, 1)
    elif p.kind == "rfl_s":
        pass
    return n


class Prog:
    def __init__(self):
        self.lines = []
        self.hist = []
        self.lds_out = 0

    def raw(self, text):
        self.lines.append(text)

    def label(self, l):
        self.lines.append(f"{l}:")
        self.hist = []

    def _emit(self, text, ins):
        dist = 0
        req = 0
        for p in reversed(self.hist):
            r = need(p, ins) - dist
            req = max(req, r)
            dist += p.ws
            if dist > 16:
                break
        while req > 0:
            k = min(req, 8)
            self.lines.append(f"    s_nop {k-1}")
            nop = Ins("nop")
            nop.ws = k
            self.hist.append(nop)
            req -= k
        self.lines.append("    " + text)
        self.hist.append(ins)
        if len(self.hist) > 40:
            self.hist = self.hist[-40:]

    def s(self, text):
        self._emit(text, Ins("salu"))

    def m0(self, text):
        self._emit(text, Ins("m0w"))

    def nop(self, k):
        self.lines.append(f"    s_nop {k-1}")
        nop = Ins("nop")
        nop.ws = k
        self.hist.append(nop)

    def v(self, op, dst, *srcs, kind="valu", ndst=1):
        rd = set()
        ts = []
        for s_ in srcs:
            if isinstance(s_, int):
                rd.add(s_)
                ts.append(f"v{s_}")
            elif isinstance(s_, tuple):
                rd.add(s_[1])
                ts.append(f"-v{s_[1]}")
            else:
                ts.append(s_)
        self._emit(f"{op} {vr(dst, ndst)}, " + ", ".join(ts), Ins(kind, R(dst, ndst), rd))

    def trans(self, op, dst, src):
        self.v(op, dst, src, kind="trans")

    def perm_swap(self, a, b):
        self._emit(f"v_permlane32_swap_b32 v{a}, v{b}", Ins("perm", {a, b}, {a, b}))

    def rfl(self, sdst, src):
        self._emit(f"v_readfirstlane_b32 {sdst}, v{src}", Ins("rfl", set(), {src}))

    def mfma(self, d, a, b, c):
        cs = "0" if c is None else vr(c, 16)
        self._emit(
            f"v_mfma_f32_32x32x16_bf16 {vr(d,16)}, {vr(a,4)}, {vr(b,4)}, {cs}",
            Ins("mfma", R(d, 16), set(), R(a, 4), R(b, 4), set() if c is None else R(c, 16)),
        )

    def ds_read(self, op, dst, n, addr, off):
        assert 0 <= off < 65536, off
        self._emit(f"{op} {vr(dst,n)}, v{addr} offset:{off}", Ins("dsr", R(dst, n), {addr}))
        self.lds_out += 1
        return self.lds_out

    def ds_write128(self, addr, data, off):
        assert 0 <= off < 65536
        self._emit(f"ds_write_b128 v{addr}, {vr(data,4)} offset:{off}", Ins("dsw", set(), {addr} | R(data, 4)))
        self.lds_out += 1

    def lgkm(self, n):
        self._emit(f"s_waitcnt lgkmcnt({min(n,15)})", Ins("wait"))

    def vmcnt(self, n):
        assert n <= 63
        self._emit(f"s_waitcnt vmcnt({n})", Ins("wait"))

    def barrier(self):
        self._emit("s_barrier", Ins("wait"))

    def vload4(self, dst, voff, srd, soff, off):
        assert 0 <= off < 4096
        self._emit(
            f"buffer_load_dwordx4 {vr(dst,4)}, v{voff}, s[{srd}:{srd+3}], {soff} offen offset:{off}",
            Ins("vml", R(dst, 4), {voff}),
        )

    def vstore4(self, data, voff, srd, soff, off):
        assert 0 <= off < 4096
        self._emit(
            f"buffer_store_dwordx4 {vr(data,4)}, v{voff}, s[{srd}:{srd+3}], {soff} offen offset:{off}",
            Ins("vms", set(), {voff} | R(data, 4)),
        )

    def dma(self, voff, srd, soff, off):
        assert 0 <= off < 4096
        self._emit(
            f"buffer_load_dwordx4 v{voff}, s[{srd}:{srd+3}], {soff} offen offset:{off} lds",
            Ins("dma", set(), {voff}),
        )


SLOT = 16384
NW = 6
KV0 = 6
NKV = 4
EXCH = KV0 * SLOT
LDS_BYTES = 10 * SLOT
KVSEQ = [("K", 0), ("K", 1)]
for t in range(2, 8):
    KVSEQ += [("V", t - 2), ("K", t)]
KVSEQ += [("V", 6), ("V", 7)]
assert len(KVSEQ) == 16
NSTEP = 48

sB, sHKV, sWAVE = 20, 21, 22
sX, sK, sV, sWQ, sWO, sWS = 24, 28, 32, 36, 40, 44
sOFF, sPAR, sC, sT0, sT1, sT2 = 48, 49, 50, 51, 52, 53
sMT = 54

vW = 1
vK = 9
vV = 17
vXO = 21
vER = 22
vSO = 23
vM, vL, vAL, vMC, vT0, vT1, vT2, vT3 = 24, 25, 26, 27, 28, 29, 30, 31
ACC = 32
FR = 96
XF = 128
QB = 128
SB = 160
PB = 224
OB = 160
BF = 128

C_SCALE = (128.0 ** -0.5) * math.log2(math.e)


def f32hex(x):
    import struct

    return "0x%08x" % struct.unpack("<I", struct.pack("<f", x))[0]


def srd(p, dst, lo, hi, nrec):
    p.s(f"s_mov_b32 s{dst}, s{lo}")
    p.s(f"s_and_b32 s{dst+1}, s{hi}, 0xffff")
    if isinstance(nrec, int):
        p.s(f"s_mov_b32 s{dst+2}, {nrec}")
    else:
        p.s(f"s_mov_b32 s{dst+2}, {nrec}")
    p.s(f"s_mov_b32 s{dst+3}, 0x00020000")


def add64(p, reg, sval):
    p.s(f"s_add_u32 s{reg}, s{reg}, {sval}")
    p.s(f"s_addc_u32 s{reg+1}, s{reg+1}, 0")


def mfma_stream(p, items, valu, nbuf_ahead, first_reads_done=False):
    nitem = len(items)
    marks = [None] * nitem
    issued = 0

    def issue(i):
        last = None
        for (op, dst, n, addr, off) in items[i]["reads"]:
            last = p.ds_read(op, dst, n, addr, off)
        marks[i] = last

    while issued < min(nbuf_ahead, nitem):
        issue(issued)
        issued += 1
    per = (len(valu) + nitem - 1) // nitem if valu else 0
    vi = 0
    for i in range(nitem):
        if marks[i] is not None:
            p.lgkm(p.lds_out - marks[i])
        for extra in items[i].get("pre", []):
            extra()
        p.mfma(*items[i]["mf"])
        if issued < nitem:
            issue(issued)
            issued += 1
        for _ in range(per):
            if vi < len(valu):
                valu[vi]()
                vi += 1
    while vi < len(valu):
        valu[vi]()
        vi += 1


def softmax_p(p, t):
    S = SB + 32 * (t & 1)
    P = PB + 16 * (t & 1)
    L = []
    A = L.append
    A(lambda: p.v("v_max3_f32", vT0, S, S + 1, S + 2))
    A(lambda: p.v("v_max3_f32", vT1, S + 3, S + 4, S + 5))
    for i in range(6, 30, 4):
        A(lambda i=i: p.v("v_max3_f32", vT0, vT0, S + i, S + i + 1))
        A(lambda i=i: p.v("v_max3_f32", vT1, vT1, S + i + 2, S + i + 3))
    A(lambda: p.v("v_max3_f32", vT0, vT0, S + 30, S + 31))
    A(lambda: p.v("v_max_f32", vT0, vT0, vT1))
    A(lambda: p.v("v_mov_b32", vT1, vT0))
    A(lambda: p.perm_swap(vT0, vT1))
    if t == 0:
        A(lambda: p.v("v_max_f32", vM, vT0, vT1))
    else:
        A(lambda: p.v("v_max3_f32", vT0, vT0, vT1, vM))
        A(lambda: p.v("v_sub_f32", vT1, vM, vT0))
        A(lambda: p.v("v_mul_f32", vT1, f"s{sC}", vT1))
        A(lambda: p.trans("v_exp_f32", vAL, vT1))
        A(lambda: p.v("v_mov_b32", vM, vT0))
    A(lambda: p.v("v_mul_f32", vMC, f"s{sC}", vM))
    for i in range(32):
        A(lambda i=i: p.v("v_fma_f32", S + i, S + i, f"s{sC}", ("neg", vMC)))
        A(lambda i=i: p.trans("v_exp_f32", S + i, S + i))
    if t == 0:
        A(lambda: p.v("v_add_f32", vL, S, S + 1))
        A(lambda: p.v("v_add_f32", vT2, S + 2, S + 3))
        st = 4
    else:
        A(lambda: p.v("v_fma_f32", vL, vL, vAL, S))
        A(lambda: p.v("v_add_f32", vT2, S + 1, S + 2))
        A(lambda: p.v("v_add_f32", vL, vL, S + 3))
        st = 4
    for i in range(st, 32, 2):
        A(lambda i=i: p.v("v_add_f32", vL, vL, S + i))
        A(lambda i=i: p.v("v_add_f32", vT2, vT2, S + i + 1))
    A(lambda: p.v("v_add_f32", vL, vL, vT2))
    for i in range(16):
        A(lambda i=i: p.v("v_cvt_pk_bf16_f32", P + i, S + 2 * i, S + 2 * i + 1))
    return L


def rescale(p):
    return [lambda i=i: p.v("v_mul_f32", ACC + i, vAL, ACC + i) for i in range(64)]


def w_items(slot_pair, bfrags, first):
    items = []
    for j in range(2):
        slot = slot_pair[j]
        for mt in range(4):
            a = FR + 16 * j + 4 * mt
            addr = vW + (slot // 4) * 4 + mt
            base = (slot % 4) * SLOT
            reads = [
                ("ds_read_b64_tr_b16", a, 2, addr, base),
                ("ds_read_b64_tr_b16", a + 2, 2, addr, base + 4096),
            ]
            c = None if (first and j == 0) else ACC + 16 * mt
            items.append(dict(reads=reads, mf=(ACC + 16 * mt, a, bfrags[j], c)))
    return items


def gen_compute(p):
    p.label("L_compute")
    lane, g, i_, r_, c_, h_, aq = vT0, vT1, vT2, vT3, vM, vL, vAL
    p.v("v_and_b32", lane, I(63), 0)
    p.v("v_lshrrev_b32", g, I(4), lane)
    p.v("v_and_b32", i_, I(15), lane)
    p.v("v_lshrrev_b32", r_, I(2), i_)
    p.v("v_and_b32", c_, I(3), i_)
    p.v("v_lshrrev_b32", h_, I(5), lane)
    p.v("v_and_b32", aq, I(1), g)
    p.v("v_lshlrev_b32", aq, I(2), aq)
    p.v("v_and_b32", vMC, I(1), c_)
    p.v("v_lshlrev_b32", vMC, I(1), vMC)
    p.v("v_or_b32", aq, aq, vMC)
    p.v("v_lshrrev_b32", vMC, I(1), c_)
    p.v("v_or_b32", aq, aq, vMC)
    p.v("v_lshlrev_b32", aq, I(3), aq)
    p.v("v_and_b32", vXO, I(31), lane)
    p.v("v_lshlrev_b32", vXO, I(10), vXO)
    p.v("v_lshlrev_b32", vMC, I(4), h_)
    p.v("v_add_u32", vXO, vXO, vMC)
    for ks in range(32):
        p.vload4(XF + 4 * ks, vXO, sX, "0", ks * 32)
    p.v("v_lshlrev_b32", vMC, I(3), h_)
    p.v("v_add_u32", vMC, vMC, r_)
    p.v("v_lshlrev_b32", vMC, I(10), vMC)
    p.v("v_add_u32", vMC, vMC, aq)
    p.s(f"s_lshl_b32 s{sT0}, s{sWAVE}, 8")
    p.v("v_add_u32", vMC, f"s{sT0}", vMC)
    for mt in range(4):
        p.v("v_xor_b32", vER, I(mt), r_)
        p.v("v_lshlrev_b32", vER, I(6), vER)
        p.v("v_add_u32", vW + mt, vMC, vER)
        p.v("v_add_u32", vW + 4 + mt, I(0x10000), vW + mt)
    p.v("v_lshlrev_b32", vMC, I(2), h_)
    p.v("v_add_u32", vMC, vMC, r_)
    p.v("v_lshlrev_b32", vMC, I(8), vMC)
    p.v("v_add_u32", vMC, vMC, aq)
    p.v("v_add_u32", vMC, I(KV0 * SLOT), vMC)
    for dt in range(4):
        p.v("v_xor_b32", vER, I(dt), r_)
        p.v("v_lshlrev_b32", vER, I(6), vER)
        p.v("v_add_u32", vV + dt, vMC, vER)
    p.v("v_and_b32", vMC, I(15), lane)
    p.v("v_xor_b32", vMC, vMC, h_)
    p.v("v_lshlrev_b32", vMC, I(4), vMC)
    p.v("v_and_b32", vER, I(31), lane)
    p.v("v_lshlrev_b32", vER, I(8), vER)
    p.v("v_add_u32", vER, I(KV0 * SLOT), vER)
    for ks in range(8):
        p.v("v_xor_b32", vK + ks, I(ks << 5), vMC)
        p.v("v_add_u32", vK + ks, vK + ks, vER)
    p.v("v_lshlrev_b32", vSO, I(4), lane)
    p.v("v_add_u32", vER, I(EXCH), vSO)
    p.s(f"s_lshl_b32 s{sT0}, s{sWAVE}, 14")
    p.v("v_add_u32", vSO, f"s{sT0}", vSO)
    p.s(f"s_lshl_b32 s{sT0}, s{sWAVE}, 13")
    p.v("v_add_u32", vXO, f"s{sT0}", vER)
    p.s(f"s_mov_b32 s{sC}, {f32hex(C_SCALE)}")
    for mt in range(4):
        p.s(f"s_mov_b32 s{sMT+mt}, {mt*4096}")

    for a in range(16):
        p.barrier()
        slots = ((2 * a) % NW, (2 * a + 1) % NW)
        items = w_items(slots, (XF + 8 * a, XF + 8 * a + 4), a == 0)
        items[0]["pre"] = [lambda a=a: p.vmcnt(30 - 2 * a)]
        mfma_stream(p, items, [], 7)
        p.lgkm(0)
    for i in range(32):
        p.v("v_cvt_pk_bf16_f32", QB + i, ACC + 2 * i, ACC + 2 * i + 1)

    for si, (kind, t) in enumerate(KVSEQ):
        p.barrier()
        base = (si % NKV) * SLOT
        items = []
        fi = 0
        if kind == "K":
            S = SB + 32 * (t & 1)
            for ks in range(8):
                for kt in range(2):
                    f = FR + 4 * (fi % 8)
                    fi += 1
                    reads = [("ds_read_b128", f, 4, vK + ks, base + kt * 8192)]
                    c = None if ks == 0 else S + 16 * kt
                    items.append(dict(reads=reads, mf=(S + 16 * kt, f, QB + 4 * ks, c)))
            valu = softmax_p(p, 0) if t == 1 else (rescale(p) if t >= 2 else [])
            mfma_stream(p, items, valu, 8)
        else:
            P = PB + 16 * (t & 1)
            for ks in range(4):
                for dt in range(4):
                    f = FR + 4 * (fi % 8)
                    fi += 1
                    reads = [
                        ("ds_read_b64_tr_b16", f, 2, vV + dt, base + ks * 4096),
                        ("ds_read_b64_tr_b16", f + 2, 2, vV + dt, base + ks * 4096 + 2048),
                    ]
                    c = None if (t == 0 and ks == 0) else ACC + 16 * dt
                    items.append(dict(reads=reads, mf=(ACC + 16 * dt, f, P + 4 * ks, c)))
            if t == 7:
                pre = rescale(p)
                items[0]["pre"] = pre
                valu = []
            else:
                valu = softmax_p(p, t + 1)
            mfma_stream(p, items, valu, 7)
        if si < 15:
            p.lgkm(0)
    p.v("v_mov_b32", vT0, vL)
    p.v("v_mov_b32", vT1, vL)
    p.perm_swap(vT0, vT1)
    p.v("v_add_f32", vT0, vT0, vT1)
    p.trans("v_rcp_f32", vT0, vT0)
    for i in range(32):
        p.v("v_mul_f32", ACC + 2 * i, vT0, ACC + 2 * i)
        p.v("v_mul_f32", ACC + 2 * i + 1, vT0, ACC + 2 * i + 1)
        p.v("v_cvt_pk_bf16_f32", OB + i, ACC + 2 * i, ACC + 2 * i + 1)
    for kk in range(8):
        p.ds_write128(vXO, OB + 4 * kk, kk * 1024)
    p.lgkm(0)
    for d in range(16):
        p.barrier()
        n0 = 32 + 2 * d
        slots = (n0 % NW, (n0 + 1) % NW)
        bf = BF + 8 * (d & 1)
        m0_ = p.ds_read("ds_read_b128", bf, 4, vER, (2 * d) * 1024)
        m1_ = p.ds_read("ds_read_b128", bf + 4, 4, vER, (2 * d + 1) * 1024)
        items = w_items(slots, (bf, bf + 4), d == 0)
        mfma_stream(p, items, [], 6)
        if d < 15:
            p.lgkm(0)
    for mt in range(4):
        for j in range(4):
            p.vstore4(ACC + 16 * mt + 4 * j, vSO, sWS, f"s{sMT+mt}", j * 1024)
    p.s("s_endpgm")


def gen_wloader(p):
    p.label("L_wload")
    p.v("v_and_b32", 10, I(63), 0)
    for j in range(4):
        p.v("v_xor_b32", 5 + j, I(j << 2), 10)
        p.v("v_lshlrev_b32", 5 + j, I(4), 5 + j)
        p.v("v_add_u32", 1 + j, I(j * 7168), 5 + j)
    p.s(f"s_and_b32 s{sT0}, s{sWAVE}, 1")
    p.s(f"s_lshl_b32 s{sPAR}, s{sT0}, 14")
    p.s(f"s_lshl_b32 s{sT1}, s{sHKV}, 10")
    p.s(f"s_lshl_b32 s{sT2}, s{sT0}, 17")
    p.s(f"s_add_u32 s{sT1}, s{sT1}, s{sT2}")
    add64(p, sWQ, f"s{sT1}")
    p.s(f"s_sub_u32 s{sWQ+2}, s{sWQ+2}, s{sT1}")
    p.s(f"s_lshl_b32 s{sT1}, s{sHKV}, 19")
    p.s(f"s_add_u32 s{sT1}, s{sT1}, s{sPAR}")
    add64(p, sWO, f"s{sT1}")
    p.s(f"s_sub_u32 s{sWO+2}, s{sWO+2}, s{sT1}")

    issued = []

    def issue(u):
        slot2 = (2 * u) % NW
        for grp in range(4):
            p.m0(f"s_add_u32 m0, s{sPAR}, {slot2*SLOT + grp*4096}")
            if u < 16:
                p.s(f"s_mov_b32 s{sOFF}, {(32*u + 4*grp)*8192}")
                for j in range(4):
                    p.dma(1 + j, sWQ, f"s{sOFF}", j * 1024)
            else:
                p.s(f"s_mov_b32 s{sOFF}, {(u-16)*32768 + grp*4096}")
                for j in range(4):
                    p.dma(5 + j, sWO, f"s{sOFF}", j * 1024)
        issued.append(u)

    def cstep(u):
        return u if u < 16 else 32 + (u - 16)

    def wait_for(step):
        us = [u for u in range(32) if cstep(u) == step]
        if not us:
            return
        u = us[0]
        k = issued.index(u)
        p.vmcnt(16 * (len(issued) - 1 - k))

    for u in range(3):
        issue(u)
    wait_for(0)
    for s in range(NSTEP):
        p.barrier()
        for u in range(3, 32):
            if cstep(u - 3) == s - 1:
                issue(u)
        if s + 1 < NSTEP:
            wait_for(s + 1)
    p.s("s_endpgm")


def gen_kvloader(p):
    p.label("L_kvload")
    L = 10
    p.v("v_and_b32", L, I(63), 0)
    p.v("v_lshrrev_b32", 11, I(4), L)
    p.v("v_and_b32", 12, I(15), L)
    p.v("v_lshlrev_b32", 13, I(8), 11)
    for j in range(4):
        p.v("v_add_u32", 14, I(4 * j), 11)
        p.v("v_xor_b32", 14, 14, 12)
        p.v("v_lshlrev_b32", 14, I(4), 14)
        p.v("v_add_u32", 1 + j, 14, 13)
    p.v("v_lshlrev_b32", 14, I(2), 11)
    p.v("v_xor_b32", 14, 14, 12)
    p.v("v_lshlrev_b32", 14, I(4), 14)
    p.v("v_add_u32", 5, 14, 13)
    p.s(f"s_and_b32 s{sT0}, s{sWAVE}, 1")
    p.s(f"s_lshl_b32 s{sPAR}, s{sT0}, 13")
    add64(p, sK, f"s{sPAR}")
    p.s(f"s_sub_u32 s{sK+2}, s{sK+2}, s{sPAR}")
    add64(p, sV, f"s{sPAR}")
    p.s(f"s_sub_u32 s{sV+2}, s{sV+2}, s{sPAR}")
    issued = []

    def issue(i):
        kind, t = KVSEQ[i]
        slot = KV0 + i % NKV
        for grp in range(2):
            p.m0(f"s_add_u32 m0, s{sPAR}, {slot*SLOT + grp*4096}")
            p.s(f"s_mov_b32 s{sOFF}, {t*16384 + grp*4096}")
            for j in range(4):
                if kind == "K":
                    p.dma(1 + j, sK, f"s{sOFF}", j * 1024)
                else:
                    p.dma(5, sV, f"s{sOFF}", j * 1024)
        issued.append(i)

    def wait_for(step):
        i = step - 16
        if not (0 <= i < 16):
            return
        k = issued.index(i)
        p.vmcnt(8 * (len(issued) - 1 - k))

    for i in range(NKV):
        issue(i)
    for s in range(NSTEP):
        p.barrier()
        i = (s - 1) - 16 + NKV
        if NKV <= i < 16:
            issue(i)
        if s + 1 < NSTEP:
            wait_for(s + 1)
    p.s("s_endpgm")


def gen_main():
    p = Prog()
    p.raw(".text")
    p.raw(f".globl {NAME}_kernel")
    p.raw(".p2align 8")
    p.raw(f".type {NAME}_kernel,@function")
    p.label(f"{NAME}_kernel")
    p.s("s_cmp_ge_u32 s2, 256")
    p.s("s_cbranch_scc1 L_exit")
    p.s("s_load_dwordx16 s[4:19], s[0:1], 0")
    p.s(f"s_and_b32 s{sHKV}, s2, 7")
    p.s(f"s_lshr_b32 s{sB}, s2, 3")
    p.v("v_lshrrev_b32", 1, I(6), 0)
    p.rfl(f"s{sWAVE}", 1)
    p.s("s_waitcnt lgkmcnt(0)")
    srd(p, sX, 4, 5, 32768)
    srd(p, sK, 6, 7, 131072)
    srd(p, sV, 8, 9, 131072)
    srd(p, sWQ, 10, 11, 4194304)
    srd(p, sWO, 12, 13, 4194304)
    srd(p, sWS, 18, 19, 65536)
    p.s(f"s_lshl_b32 s{sT0}, s{sB}, 15")
    add64(p, sX, f"s{sT0}")
    p.s(f"s_lshl_b32 s{sT0}, s2, 17")
    add64(p, sK, f"s{sT0}")
    add64(p, sV, f"s{sT0}")
    p.s(f"s_lshl_b32 s{sT0}, s{sHKV}, 5")
    p.s(f"s_add_u32 s{sT0}, s{sT0}, s{sB}")
    p.s(f"s_lshl_b32 s{sT0}, s{sT0}, 16")
    add64(p, sWS, f"s{sT0}")
    p.s(f"s_cmp_ge_u32 s{sWAVE}, 6")
    p.s("s_cbranch_scc1 L_kvload")
    p.s(f"s_cmp_ge_u32 s{sWAVE}, 4")
    p.s("s_cbranch_scc1 L_wload")
    gen_compute(p)
    gen_wloader(p)
    gen_kvloader(p)
    p.label("L_exit")
    p.s("s_endpgm")
    return p


def gen_reduce():
    p = Prog()
    p.raw(".globl gqa_reduce_kernel")
    p.raw(".p2align 8")
    p.raw(".type gqa_reduce_kernel,@function")
    p.label("gqa_reduce_kernel")
    p.s("s_cmp_ge_u32 s2, 256")
    p.s("s_cbranch_scc1 L_rexit")
    p.s("s_load_dwordx2 s[4:5], s[0:1], 40")
    p.s("s_load_dwordx2 s[6:7], s[0:1], 56")
    p.v("v_lshrrev_b32", 1, I(6), 0)
    p.v("v_and_b32", 2, I(63), 0)
    p.s("s_lshl_b32 s3, s2, 2")
    p.v("v_add_u32", 1, "s3", 1)
    p.v("v_lshlrev_b32", 3, I(11), 1)
    p.v("v_lshlrev_b32", 4, I(4), 2)
    p.v("v_add_u32", 3, 3, 4)
    p.v("v_lshrrev_b32", 5, I(5), 1)
    p.v("v_lshlrev_b32", 5, I(5), 5)
    p.v("v_and_b32", 6, I(31), 2)
    p.v("v_add_u32", 5, 5, 6)
    p.v("v_lshlrev_b32", 5, I(10), 5)
    p.v("v_and_b32", 6, I(31), 1)
    p.v("v_lshlrev_b32", 6, I(5), 6)
    p.v("v_add_u32", 5, 5, 6)
    p.v("v_lshrrev_b32", 6, I(5), 2)
    p.v("v_lshlrev_b32", 6, I(4), 6)
    p.v("v_add_u32", 5, 5, 6)
    p.s("s_waitcnt lgkmcnt(0)")
    srd(p, 8, 4, 5, 1048576)
    srd(p, 12, 6, 7, 16777216)
    for hk in range(8):
        p.s(f"s_mov_b32 s{16+hk}, {hk*2097152}")
    for hk in range(8):
        p.vload4(8 + 8 * hk, 3, 12, f"s{16+hk}", 0)
        p.vload4(12 + 8 * hk, 3, 12, f"s{16+hk}", 1024)
    for hk in range(1, 8):
        p.vmcnt(14 - 2 * hk)
        for e in range(8):
            p.v("v_add_f32", 8 + e, 8 + e, 8 + 8 * hk + e)
    for e in range(4):
        p.v("v_cvt_pk_bf16_f32", 80 + e, 8 + 2 * e, 9 + 2 * e)
    p.vstore4(80, 5, 8, "0", 0)
    p.label("L_rexit")
    p.s("s_endpgm")
    return p


def kd(name, vgpr):
    return f""".amdhsa_kernel {name}
  .amdhsa_next_free_vgpr {vgpr}
  .amdhsa_next_free_sgpr 102
  .amdhsa_accum_offset {vgpr}
  .amdhsa_group_segment_fixed_size 0
  .amdhsa_kernarg_size 64
  .amdhsa_user_sgpr_count 2
  .amdhsa_user_sgpr_kernarg_segment_ptr 1
  .amdhsa_system_sgpr_workgroup_id_x 1
.end_amdhsa_kernel
"""


def main():
    m = gen_main()
    r = gen_reduce()
    txt = HEADER
    txt += f"; @launch kernel={NAME}_kernel grid=(256,1,1) block=(512,1,1) lds={LDS_BYTES}\n"
    txt += "; @launch kernel=gqa_reduce_kernel grid=(256,1,1) block=(256,1,1) lds=0\n"
    txt += '.amdgcn_target "amdgcn-amd-amdhsa--gfx950"\n'
    txt += "\n".join(m.lines) + "\n"
    txt += "\n".join(r.lines) + "\n"
    txt += '.section .rodata,"a"\n.p2align 6\n'
    txt += kd(f"{NAME}_kernel", 256)
    txt += ".p2align 6\n"
    txt += kd("gqa_reduce_kernel", 88)
    open(OUT, "w").write(txt)
    print("wrote", OUT, len(txt), "bytes", len(m.lines), "lines")


main()
```

```python
import sys, math

NAME = "standalone__gqa_block_cached__near_ridge"
OUT = sys.argv[1] if len(sys.argv) > 1 else f"cdna_kernels/{NAME}.s"

HEADER = """; Kernarg layout for this problem (64 bytes, ptrs only, base s[0:1]):
"""


def R(a, n=1):
    return set(range(a, a + n))


def I(x):
    return str(x)


def vr(a, n):
    return f"v{a}" if n == 1 else f"v[{a}:{a+n-1}]"


class Ins:
    __slots__ = ("kind", "wr", "rd", "a", "b", "c", "d", "ws")

    def __init__(self, kind, wr=None, rd=None, a=None, b=None, c=None, d=None):
        self.kind = kind
        self.wr = wr or set()
        self.rd = rd or set()
        self.a, self.b, self.c, self.d = a, b, c, d
        self.ws = 1


VALUISH = ("valu", "trans", "perm", "rfl")


def need(p, c):
    n = 0
    if p.kind == "mfma":
        pd = p.wr
        if c.kind == "mfma":
            if (c.a | c.b) & pd:
                n = max(n, 12)
            if c.c & pd:
                n = max(n, 0 if c.c == pd else 10)
            elif c.wr & pd:
                n = max(n, 10)
        elif c.kind in VALUISH:
            if (c.rd | c.wr) & pd:
                n = max(n, 12)
            if c.wr & p.c:
                n = max(n, 7)
        elif c.kind in ("dsr", "dsw", "vml", "vms"):
            if (c.rd | c.wr) & pd:
                n = max(n, 12)
    elif p.kind in VALUISH:
        if c.kind == "mfma" and (c.a | c.b | c.c) & p.wr:
            n = max(n, 2)
        if p.kind == "trans" and c.kind != "mfma" and (c.rd & p.wr):
            n = max(n, 1)
        if c.kind == "perm" and (c.rd & p.wr):
            n = max(n, 2)
        if c.kind == "rfl" and (c.rd & p.wr):
            n = max(n, 1)
    elif p.kind in ("vms", "dsw"):
        if c.kind in VALUISH and (c.wr & p.rd):
            n = max(n, 2)
    elif p.kind == "m0w":
        if c.kind == "dma":
            n = max(n, 1)
    elif p.kind == "rfl_s":
        pass
    return n


class Prog:
    def __init__(self):
        self.lines = []
        self.hist = []
        self.lds_out = 0

    def raw(self, text):
        self.lines.append(text)

    def label(self, l):
        self.lines.append(f"{l}:")
        self.hist = []

    def _emit(self, text, ins):
        dist = 0
        req = 0
        for p in reversed(self.hist):
            r = need(p, ins) - dist
            req = max(req, r)
            dist += p.ws
            if dist > 16:
                break
        while req > 0:
            k = min(req, 8)
            self.lines.append(f"    s_nop {k-1}")
            nop = Ins("nop")
            nop.ws = k
            self.hist.append(nop)
            req -= k
        self.lines.append("    " + text)
        self.hist.append(ins)
        if len(self.hist) > 40:
            self.hist = self.hist[-40:]

    def s(self, text):
        self._emit(text, Ins("salu"))

    def m0(self, text):
        self._emit(text, Ins("m0w"))

    def nop(self, k):
        self.lines.append(f"    s_nop {k-1}")
        nop = Ins("nop")
        nop.ws = k
        self.hist.append(nop)

    def v(self, op, dst, *srcs, kind="valu", ndst=1):
        rd = set()
        ts = []
        for s_ in srcs:
            if isinstance(s_, int):
                rd.add(s_)
                ts.append(f"v{s_}")
            elif isinstance(s_, tuple):
                rd.add(s_[1])
                ts.append(f"-v{s_[1]}")
            else:
                ts.append(s_)
        self._emit(f"{op} {vr(dst, ndst)}, " + ", ".join(ts), Ins(kind, R(dst, ndst), rd))

    def trans(self, op, dst, src):
        self.v(op, dst, src, kind="trans")

    def perm_swap(self, a, b):
        self._emit(f"v_permlane32_swap_b32 v{a}, v{b}", Ins("perm", {a, b}, {a, b}))

    def rfl(self, sdst, src):
        self._emit(f"v_readfirstlane_b32 {sdst}, v{src}", Ins("rfl", set(), {src}))

    def mfma(self, d, a, b, c):
        cs = "0" if c is None else vr(c, 16)
        self._emit(
            f"v_mfma_f32_32x32x16_bf16 {vr(d,16)}, {vr(a,4)}, {vr(b,4)}, {cs}",
            Ins("mfma", R(d, 16), set(), R(a, 4), R(b, 4), set() if c is None else R(c, 16)),
        )

    def ds_read(self, op, dst, n, addr, off):
        assert 0 <= off < 65536, off
        self._emit(f"{op} {vr(dst,n)}, v{addr} offset:{off}", Ins("dsr", R(dst, n), {addr}))
        self.lds_out += 1
        return self.lds_out

    def ds_write128(self, addr, data, off):
        assert 0 <= off < 65536
        self._emit(f"ds_write_b128 v{addr}, {vr(data,4)} offset:{off}", Ins("dsw", set(), {addr} | R(data, 4)))
        self.lds_out += 1

    def lgkm(self, n):
        self._emit(f"s_waitcnt lgkmcnt({min(n,15)})", Ins("wait"))

    def vmcnt(self, n):
        assert n <= 63
        self._emit(f"s_waitcnt vmcnt({n})", Ins("wait"))

    def barrier(self):
        self._emit("s_barrier", Ins("wait"))

    def vload4(self, dst, voff, srd, soff, off):
        assert 0 <= off < 4096
        self._emit(
            f"buffer_load_dwordx4 {vr(dst,4)}, v{voff}, s[{srd}:{srd+3}], {soff} offen offset:{off}",
            Ins("vml", R(dst, 4), {voff}),
        )

    def vstore4(self, data, voff, srd, soff, off):
        assert 0 <= off < 4096
        self._emit(
            f"buffer_store_dwordx4 {vr(data,4)}, v{voff}, s[{srd}:{srd+3}], {soff} offen offset:{off}",
            Ins("vms", set(), {voff} | R(data, 4)),
        )

    def dma(self, voff, srd, soff, off):
        assert 0 <= off < 4096
        self._emit(
            f"buffer_load_dwordx4 v{voff}, s[{srd}:{srd+3}], {soff} offen offset:{off} lds",
            Ins("dma", set(), {voff}),
        )


SLOT = 16384
NW = 6
KV0 = 6
NKV = 4
EXCH = KV0 * SLOT
LDS_BYTES = 10 * SLOT
KVSEQ = [("K", 0), ("K", 1)]
for t in range(2, 8):
    KVSEQ += [("V", t - 2), ("K", t)]
KVSEQ += [("V", 6), ("V", 7)]
assert len(KVSEQ) == 16
NSTEP = 48

sB, sHKV, sWAVE = 20, 21, 22
sX, sK, sV, sWQ, sWO, sWS = 24, 28, 32, 36, 40, 44
sOFF, sPAR, sC, sT0, sT1, sT2 = 48, 49, 50, 51, 52, 53
sMT = 54

vW = 1
vK = 9
vV = 17
vXO = 21
vER = 22
vSO = 23
vM, vL, vAL, vMC, vT0, vT1, vT2, vT3 = 24, 25, 26, 27, 28, 29, 30, 31
ACC = 32
FR = 96
XF = 128
QB = 128
SB = 160
PB = 224
OB = 160
BF = 128

C_SCALE = (128.0 ** -0.5) * math.log2(math.e)


def f32hex(x):
    import struct

    return "0x%08x" % struct.unpack("<I", struct.pack("<f", x))[0]


def srd(p, dst, lo, hi, nrec):
    p.s(f"s_mov_b32 s{dst}, s{lo}")
    p.s(f"s_and_b32 s{dst+1}, s{hi}, 0xffff")
    if isinstance(nrec, int):
        p.s(f"s_mov_b32 s{dst+2}, {nrec}")
    else:
        p.s(f"s_mov_b32 s{dst+2}, {nrec}")
    p.s(f"s_mov_b32 s{dst+3}, 0x00020000")


def add64(p, reg, sval):
    p.s(f"s_add_u32 s{reg}, s{reg}, {sval}")
    p.s(f"s_addc_u32 s{reg+1}, s{reg+1}, 0")


def mfma_stream(p, items, valu, nbuf_ahead, first_reads_done=False):
    nitem = len(items)
    marks = [None] * nitem
    issued = 0

    def issue(i):
        last = None
        for (op, dst, n, addr, off) in items[i]["reads"]:
            last = p.ds_read(op, dst, n, addr, off)
        marks[i] = last

    while issued < min(nbuf_ahead, nitem):
        issue(issued)
        issued += 1
    per = (len(valu) + nitem - 1) // nitem if valu else 0
    vi = 0
    for i in range(nitem):
        if marks[i] is not None:
            p.lgkm(p.lds_out - marks[i])
        for extra in items[i].get("pre", []):
            extra()
        p.mfma(*items[i]["mf"])
        if issued < nitem:
            issue(issued)
            issued += 1
        for _ in range(per):
            if vi < len(valu):
                valu[vi]()
                vi += 1
    while vi < len(valu):
        valu[vi]()
        vi += 1


def softmax_p(p, t):
    S = SB + 32 * (t & 1)
    P = PB + 16 * (t & 1)
    L = []
    A = L.append
    A(lambda: p.v("v_max3_f32", vT0, S, S + 1, S + 2))
    A(lambda: p.v("v_max3_f32", vT1, S + 3, S + 4, S + 5))
    for i in range(6, 30, 4):
        A(lambda i=i: p.v("v_max3_f32", vT0, vT0, S + i, S + i + 1))
        A(lambda i=i: p.v("v_max3_f32", vT1, vT1, S + i + 2, S + i + 3))
    A(lambda: p.v("v_max3_f32", vT0, vT0, S + 30, S + 31))
    A(lambda: p.v("v_max_f32", vT0, vT0, vT1))
    A(lambda: p.v("v_mov_b32", vT1, vT0))
    A(lambda: p.perm_swap(vT0, vT1))
    if t == 0:
        A(lambda: p.v("v_max_f32", vM, vT0, vT1))
    else:
        A(lambda: p.v("v_max3_f32", vT0, vT0, vT1, vM))
        A(lambda: p.v("v_sub_f32", vT1, vM, vT0))
        A(lambda: p.v("v_mul_f32", vT1, f"s{sC}", vT1))
        A(lambda: p.trans("v_exp_f32", vAL, vT1))
        A(lambda: p.v("v_mov_b32", vM, vT0))
    A(lambda: p.v("v_mul_f32", vMC, f"s{sC}", vM))
    for i in range(32):
        A(lambda i=i: p.v("v_fma_f32", S + i, S + i, f"s{sC}", ("neg", vMC)))
        A(lambda i=i: p.trans("v_exp_f32", S + i, S + i))
    if t == 0:
        A(lambda: p.v("v_add_f32", vL, S, S + 1))
        A(lambda: p.v("v_add_f32", vT2, S + 2, S + 3))
        st = 4
    else:
        A(lambda: p.v("v_fma_f32", vL, vL, vAL, S))
        A(lambda: p.v("v_add_f32", vT2, S + 1, S + 2))
        A(lambda: p.v("v_add_f32", vL, vL, S + 3))
        st = 4
    for i in range(st, 32, 2):
        A(lambda i=i: p.v("v_add_f32", vL, vL, S + i))
        A(lambda i=i: p.v("v_add_f32", vT2, vT2, S + i + 1))
    A(lambda: p.v("v_add_f32", vL, vL, vT2))
    for i in range(16):
        A(lambda i=i: p.v("v_cvt_pk_bf16_f32", P + i, S + 2 * i, S + 2 * i + 1))
    return L


def rescale(p):
    return [lambda i=i: p.v("v_mul_f32", ACC + i, vAL, ACC + i) for i in range(64)]


def w_items(slot_pair, bfrags, first):
    items = []
    for j in range(2):
        slot = slot_pair[j]
        for mt in range(4):
            a = FR + 16 * j + 4 * mt
            addr = vW + (slot // 4) * 4 + mt
            base = (slot % 4) * SLOT
            reads = [
                ("ds_read_b64_tr_b16", a, 2, addr, base),
                ("ds_read_b64_tr_b16", a + 2, 2, addr, base + 4096),
            ]
            c = None if (first and j == 0) else ACC + 16 * mt
            items.append(dict(reads=reads, mf=(ACC + 16 * mt, a, bfrags[j], c)))
    return items


def gen_compute(p):
    p.label("L_compute")
    lane, g, i_, r_, c_, h_, aq = vT0, vT1, vT2, vT3, vM, vL, vAL
    p.v("v_and_b32", lane, I(63), 0)
    p.v("v_lshrrev_b32", g, I(4), lane)
    p.v("v_and_b32", i_, I(15), lane)
    p.v("v_lshrrev_b32", r_, I(2), i_)
    p.v("v_and_b32", c_, I(3), i_)
    p.v("v_lshrrev_b32", h_, I(5), lane)
    p.v("v_and_b32", aq, I(1), g)
    p.v("v_lshlrev_b32", aq, I(2), aq)
    p.v("v_and_b32", vMC, I(1), c_)
    p.v("v_lshlrev_b32", vMC, I(1), vMC)
    p.v("v_or_b32", aq, aq, vMC)
    p.v("v_lshrrev_b32", vMC, I(1), c_)
    p.v("v_or_b32", aq, aq, vMC)
    p.v("v_lshlrev_b32", aq, I(3), aq)
    p.v("v_and_b32", vXO, I(31), lane)
    p.v("v_lshlrev_b32", vXO, I(10), vXO)
    p.v("v_lshlrev_b32", vMC, I(4), h_)
    p.v("v_add_u32", vXO, vXO, vMC)
    for ks in range(32):
        p.vload4(XF + 4 * ks, vXO, sX, "0", ks * 32)
    p.v("v_lshlrev_b32", vMC, I(3), h_)
    p.v("v_add_u32", vMC, vMC, r_)
    p.v("v_lshlrev_b32", vMC, I(10), vMC)
    p.v("v_add_u32", vMC, vMC, aq)
    p.s(f"s_lshl_b32 s{sT0}, s{sWAVE}, 8")
    p.v("v_add_u32", vMC, f"s{sT0}", vMC)
    for mt in range(4):
        p.v("v_xor_b32", vER, I(mt), r_)
        p.v("v_lshlrev_b32", vER, I(6), vER)
        p.v("v_add_u32", vW + mt, vMC, vER)
        p.v("v_add_u32", vW + 4 + mt, I(0x10000), vW + mt)
    p.v("v_lshlrev_b32", vMC, I(2), h_)
    p.v("v_add_u32", vMC, vMC, r_)
    p.v("v_lshlrev_b32", vMC, I(8), vMC)
    p.v("v_add_u32", vMC, vMC, aq)
    p.v("v_add_u32", vMC, I(KV0 * SLOT), vMC)
    for dt in range(4):
        p.v("v_xor_b32", vER, I(dt), r_)
        p.v("v_lshlrev_b32", vER, I(6), vER)
        p.v("v_add_u32", vV + dt, vMC, vER)
    p.v("v_and_b32", vMC, I(15), lane)
    p.v("v_xor_b32", vMC, vMC, h_)
    p.v("v_lshlrev_b32", vMC, I(4), vMC)
    p.v("v_and_b32", vER, I(31), lane)
    p.v("v_lshlrev_b32", vER, I(8), vER)
    p.v("v_add_u32", vER, I(KV0 * SLOT), vER)
    for ks in range(8):
        p.v("v_xor_b32", vK + ks, I(ks << 5), vMC)
        p.v("v_add_u32", vK + ks, vK + ks, vER)
    p.v("v_lshlrev_b32", vSO, I(4), lane)
    p.v("v_add_u32", vER, I(EXCH), vSO)
    p.s(f"s_lshl_b32 s{sT0}, s{sWAVE}, 14")
    p.v("v_add_u32", vSO, f"s{sT0}", vSO)
    p.s(f"s_lshl_b32 s{sT0}, s{sWAVE}, 13")
    p.v("v_add_u32", vXO, f"s{sT0}", vER)
    p.s(f"s_mov_b32 s{sC}, {f32hex(C_SCALE)}")
    for mt in range(4):
        p.s(f"s_mov_b32 s{sMT+mt}, {mt*4096}")

    for a in range(16):
        p.barrier()
        slots = ((2 * a) % NW, (2 * a + 1) % NW)
        items = w_items(slots, (XF + 8 * a, XF + 8 * a + 4), a == 0)
        items[0]["pre"] = [lambda a=a: p.vmcnt(30 - 2 * a)]
        mfma_stream(p, items, [], 7)
        p.lgkm(0)
    for i in range(32):
        p.v("v_cvt_pk_bf16_f32", QB + i, ACC + 2 * i, ACC + 2 * i + 1)

    for si, (kind, t) in enumerate(KVSEQ):
        p.barrier()
        base = (si % NKV) * SLOT
        items = []
        fi = 0
        if kind == "K":
            S = SB + 32 * (t & 1)
            for ks in range(8):
                for kt in range(2):
                    f = FR + 4 * (fi % 8)
                    fi += 1
                    reads = [("ds_read_b128", f, 4, vK + ks, base + kt * 8192)]
                    c = None if ks == 0 else S + 16 * kt
                    items.append(dict(reads=reads, mf=(S + 16 * kt, f, QB + 4 * ks, c)))
            valu = softmax_p(p, 0) if t == 1 else (rescale(p) if t >= 2 else [])
            mfma_stream(p, items, valu, 8)
        else:
            P = PB + 16 * (t & 1)
            for ks in range(4):
                for dt in range(4):
                    f = FR + 4 * (fi % 8)
                    fi += 1
                    reads = [
                        ("ds_read_b64_tr_b16", f, 2, vV + dt, base + ks * 4096),
                        ("ds_read_b64_tr_b16", f + 2, 2, vV + dt, base + ks * 4096 + 2048),
                    ]
                    c = None if (t == 0 and ks == 0) else ACC + 16 * dt
                    items.append(dict(reads=reads, mf=(ACC + 16 * dt, f, P + 4 * ks, c)))
            if t == 7:
                pre = rescale(p)
                items[0]["pre"] = pre
                valu = []
            else:
                valu = softmax_p(p, t + 1)
            mfma_stream(p, items, valu, 7)
        if si < 15:
            p.lgkm(0)
    p.v("v_mov_b32", vT0, vL)
    p.v("v_mov_b32", vT1, vL)
    p.perm_swap(vT0, vT1)
    p.v("v_add_f32", vT0, vT0, vT1)
    p.trans("v_rcp_f32", vT0, vT0)
    for i in range(32):
        p.v("v_mul_f32", ACC + 2 * i, vT0, ACC + 2 * i)
        p.v("v_mul_f32", ACC + 2 * i + 1, vT0, ACC + 2 * i + 1)
        p.v("v_cvt_pk_bf16_f32", OB + i, ACC + 2 * i, ACC + 2 * i + 1)
    for kk in range(8):
        p.ds_write128(vXO, OB + 4 * kk, kk * 1024)
    p.lgkm(0)
    for d in range(16):
        p.barrier()
        n0 = 32 + 2 * d
        slots = (n0 % NW, (n0 + 1) % NW)
        bf = BF + 8 * (d & 1)
        m0_ = p.ds_read("ds_read_b128", bf, 4, vER, (2 * d) * 1024)
        m1_ = p.ds_read("ds_read_b128", bf + 4, 4, vER, (2 * d + 1) * 1024)
        items = w_items(slots, (bf, bf + 4), d == 0)
        mfma_stream(p, items, [], 6)
        if d < 15:
            p.lgkm(0)
    for mt in range(4):
        for j in range(4):
            p.vstore4(ACC + 16 * mt + 4 * j, vSO, sWS, f"s{sMT+mt}", j * 1024)
    p.s("s_endpgm")


RING = 60
RB = 12


class Loader:
    def __init__(self, p, nunits, load_fn, lds_addr_fn):
        self.p = p
        self.n = nunits
        self.load_fn = load_fn
        self.lds_addr_fn = lds_addr_fn
        self.issued = 0
        self.written = 0

    def reg(self, u):
        return RB + 4 * (u % RING)

    def issue_upto(self, lim):
        lim = min(lim, self.n)
        while self.issued < lim:
            self.load_fn(self.issued, self.reg(self.issued))
            self.issued += 1

    def write_units(self, cnt):
        p = self.p
        if cnt == 0:
            return
        end = self.written + cnt
        lastw = None
        while self.written < end:
            u = self.written
            if u % 4 == 0 or lastw is None:
                ge = min(end, (u // 4 + 1) * 4)
                p.vmcnt(min(63, self.issued - ge))
                lastw = u
            addr = self.lds_addr_fn(u)
            p.ds_write128(9 + addr // 65536, self.reg(u), addr % 65536)
            self.written += 1
        p.lgkm(0)
        self.issue_upto(self.written + RING)


def gen_wloader(p):
    p.label("L_wload")
    p.v("v_and_b32", 11, I(63), 0)
    for j in range(4):
        p.v("v_xor_b32", 5 + j, I(j << 2), 11)
        p.v("v_lshlrev_b32", 5 + j, I(4), 5 + j)
        p.v("v_add_u32", 1 + j, I(j * 8192), 5 + j)
    p.s(f"s_and_b32 s{sT0}, s{sWAVE}, 1")
    p.s(f"s_lshl_b32 s{sPAR}, s{sT0}, 14")
    p.v("v_lshlrev_b32", 9, I(4), 11)
    p.v("v_add_u32", 9, f"s{sPAR}", 9)
    p.v("v_add_u32", 10, I(65536), 9)
    p.v("v_add_u32", 11, I(131072), 9)
    p.s(f"s_lshl_b32 s{sT1}, s{sHKV}, 10")
    p.s(f"s_lshl_b32 s{sT2}, s{sT0}, 17")
    p.s(f"s_add_u32 s{sT1}, s{sT1}, s{sT2}")
    add64(p, sWQ, f"s{sT1}")
    p.s(f"s_sub_u32 s{sWQ+2}, s{sWQ+2}, s{sT1}")
    p.s(f"s_lshl_b32 s{sT1}, s{sHKV}, 19")
    p.s(f"s_add_u32 s{sT1}, s{sT1}, s{sPAR}")
    add64(p, sWO, f"s{sT1}")
    p.s(f"s_sub_u32 s{sWO+2}, s{sWO+2}, s{sT1}")

    def load_fn(unit, dst):
        u, row = unit // 16, unit % 16
        grp, j = row // 4, row % 4
        if u < 16:
            if j == 0:
                p.s(f"s_mov_b32 s{sOFF}, {(32*u + 4*grp)*8192}")
            p.vload4(dst, 1 + j, sWQ, f"s{sOFF}", 0)
        else:
            if j == 0:
                p.s(f"s_mov_b32 s{sOFF}, {(u-16)*32768 + grp*4096}")
            p.vload4(dst, 5 + j, sWO, f"s{sOFF}", j * 1024)

    def lds_fn(unit):
        u, row = unit // 16, unit % 16
        return ((2 * u) % NW) * SLOT + row * 1024

    ld = Loader(p, 512, load_fn, lds_fn)

    def cstep(u):
        return u if u < 16 else 32 + (u - 16)

    ld.issue_upto(RING)
    ld.write_units(48)
    for s in range(NSTEP):
        p.barrier()
        for u in range(3, 32):
            if cstep(u - 3) == s - 1:
                ld.write_units(16)
    p.s("s_endpgm")


def gen_kvloader(p):
    p.label("L_kvload")
    L = 9
    p.v("v_and_b32", L, I(63), 0)
    p.v("v_lshrrev_b32", 11, I(4), L)
    p.v("v_and_b32", 12, I(15), L)
    p.v("v_lshlrev_b32", 13, I(8), 11)
    for j in range(4):
        p.v("v_add_u32", 14, I(4 * j), 11)
        p.v("v_xor_b32", 14, 14, 12)
        p.v("v_lshlrev_b32", 14, I(4), 14)
        p.v("v_add_u32", 1 + j, 14, 13)
    p.v("v_lshlrev_b32", 14, I(2), 11)
    p.v("v_xor_b32", 14, 14, 12)
    p.v("v_lshlrev_b32", 14, I(4), 14)
    p.v("v_add_u32", 5, 14, 13)
    p.s(f"s_and_b32 s{sT0}, s{sWAVE}, 1")
    p.s(f"s_lshl_b32 s{sPAR}, s{sT0}, 13")
    p.v("v_lshlrev_b32", 9, I(4), L)
    p.v("v_add_u32", 9, f"s{sPAR}", 9)
    p.v("v_add_u32", 10, I(65536), 9)
    p.v("v_add_u32", 11, I(131072), 9)
    add64(p, sK, f"s{sPAR}")
    p.s(f"s_sub_u32 s{sK+2}, s{sK+2}, s{sPAR}")
    add64(p, sV, f"s{sPAR}")
    p.s(f"s_sub_u32 s{sV+2}, s{sV+2}, s{sPAR}")

    def load_fn(unit, dst):
        i, jj = unit // 8, unit % 8
        kind, t = KVSEQ[i]
        grp, j = jj // 4, jj % 4
        if j == 0:
            p.s(f"s_mov_b32 s{sOFF}, {t*16384 + grp*4096}")
        if kind == "K":
            p.vload4(dst, 1 + j, sK, f"s{sOFF}", j * 1024)
        else:
            p.vload4(dst, 5, sV, f"s{sOFF}", j * 1024)

    def lds_fn(unit):
        i, jj = unit // 8, unit % 8
        return (KV0 + i % NKV) * SLOT + jj * 1024

    ld = Loader(p, 128, load_fn, lds_fn)
    ld.issue_upto(RING)
    for s in range(NSTEP):
        p.barrier()
        if s in (3, 6, 9, 12):
            ld.write_units(8)
        i = (s - 1) - 16 + NKV
        if NKV <= i < 16:
            ld.write_units(8)
    p.s("s_endpgm")


def gen_main():
    p = Prog()
    p.raw(".text")
    p.raw(f".globl {NAME}_kernel")
    p.raw(".p2align 8")
    p.raw(f".type {NAME}_kernel,@function")
    p.label(f"{NAME}_kernel")
    p.s("s_cmp_ge_u32 s2, 256")
    p.s("s_cbranch_scc1 L_exit")
    p.s("s_load_dwordx16 s[4:19], s[0:1], 0")
    p.s(f"s_and_b32 s{sHKV}, s2, 7")
    p.s(f"s_lshr_b32 s{sB}, s2, 3")
    p.v("v_lshrrev_b32", 1, I(6), 0)
    p.rfl(f"s{sWAVE}", 1)
    p.s("s_waitcnt lgkmcnt(0)")
    srd(p, sX, 4, 5, 32768)
    srd(p, sK, 6, 7, 131072)
    srd(p, sV, 8, 9, 131072)
    srd(p, sWQ, 10, 11, 4194304)
    srd(p, sWO, 12, 13, 4194304)
    srd(p, sWS, 18, 19, 65536)
    p.s(f"s_lshl_b32 s{sT0}, s{sB}, 15")
    add64(p, sX, f"s{sT0}")
    p.s(f"s_lshl_b32 s{sT0}, s2, 17")
    add64(p, sK, f"s{sT0}")
    add64(p, sV, f"s{sT0}")
    p.s(f"s_lshl_b32 s{sT0}, s{sHKV}, 5")
    p.s(f"s_add_u32 s{sT0}, s{sT0}, s{sB}")
    p.s(f"s_lshl_b32 s{sT0}, s{sT0}, 16")
    add64(p, sWS, f"s{sT0}")
    p.s(f"s_cmp_ge_u32 s{sWAVE}, 6")
    p.s("s_cbranch_scc1 L_kvload")
    p.s(f"s_cmp_ge_u32 s{sWAVE}, 4")
    p.s("s_cbranch_scc1 L_wload")
    gen_compute(p)
    gen_wloader(p)
    gen_kvloader(p)
    p.label("L_exit")
    p.s("s_endpgm")
    return p


def gen_reduce():
    p = Prog()
    p.raw(".globl gqa_reduce_kernel")
    p.raw(".p2align 8")
    p.raw(".type gqa_reduce_kernel,@function")
    p.label("gqa_reduce_kernel")
    p.s("s_cmp_ge_u32 s2, 256")
    p.s("s_cbranch_scc1 L_rexit")
    p.s("s_load_dwordx2 s[4:5], s[0:1], 40")
    p.s("s_load_dwordx2 s[6:7], s[0:1], 56")
    p.v("v_lshrrev_b32", 1, I(6), 0)
    p.v("v_and_b32", 2, I(63), 0)
    p.s("s_lshl_b32 s3, s2, 2")
    p.v("v_add_u32", 1, "s3", 1)
    p.v("v_lshlrev_b32", 3, I(11), 1)
    p.v("v_lshlrev_b32", 4, I(4), 2)
    p.v("v_add_u32", 3, 3, 4)
    p.v("v_lshrrev_b32", 5, I(5), 1)
    p.v("v_lshlrev_b32", 5, I(5), 5)
    p.v("v_and_b32", 6, I(31), 2)
    p.v("v_add_u32", 5, 5, 6)
    p.v("v_lshlrev_b32", 5, I(10), 5)
    p.v("v_and_b32", 6, I(31), 1)
    p.v("v_lshlrev_b32", 6, I(5), 6)
    p.v("v_add_u32", 5, 5, 6)
    p.v("v_lshrrev_b32", 6, I(5), 2)
    p.v("v_lshlrev_b32", 6, I(4), 6)
    p.v("v_add_u32", 5, 5, 6)
    p.s("s_waitcnt lgkmcnt(0)")
    srd(p, 8, 4, 5, 1048576)
    srd(p, 12, 6, 7, 16777216)
    for hk in range(8):
        p.s(f"s_mov_b32 s{16+hk}, {hk*2097152}")
    for hk in range(8):
        p.vload4(8 + 8 * hk, 3, 12, f"s{16+hk}", 0)
        p.vload4(12 + 8 * hk, 3, 12, f"s{16+hk}", 1024)
    for hk in range(1, 8):
        p.vmcnt(14 - 2 * hk)
        for e in range(8):
            p.v("v_add_f32", 8 + e, 8 + e, 8 + 8 * hk + e)
    for e in range(4):
        p.v("v_cvt_pk_bf16_f32", 80 + e, 8 + 2 * e, 9 + 2 * e)
    p.vstore4(80, 5, 8, "0", 0)
    p.label("L_rexit")
    p.s("s_endpgm")
    return p


def kd(name, vgpr):
    return f""".amdhsa_kernel {name}
  .amdhsa_next_free_vgpr {vgpr}
  .amdhsa_next_free_sgpr 102
  .amdhsa_accum_offset {vgpr}
  .amdhsa_group_segment_fixed_size 0
  .amdhsa_kernarg_size 64
  .amdhsa_user_sgpr_count 2
  .amdhsa_user_sgpr_kernarg_segment_ptr 1
  .amdhsa_system_sgpr_workgroup_id_x 1
.end_amdhsa_kernel
"""


def main():
    m = gen_main()
    r = gen_reduce()
    txt = HEADER
    txt += f"; @launch kernel={NAME}_kernel grid=(256,1,1) block=(512,1,1) lds={LDS_BYTES}\n"
    txt += "; @launch kernel=gqa_reduce_kernel grid=(256,1,1) block=(256,1,1) lds=0\n"
    txt += '.amdgcn_target "amdgcn-amd-amdhsa--gfx950"\n'
    txt += "\n".join(m.lines) + "\n"
    txt += "\n".join(r.lines) + "\n"
    txt += '.section .rodata,"a"\n.p2align 6\n'
    txt += kd(f"{NAME}_kernel", 256)
    txt += ".p2align 6\n"
    txt += kd("gqa_reduce_kernel", 88)
    open(OUT, "w").write(txt)
    print("wrote", OUT, len(txt), "bytes", len(m.lines), "lines")


main()
```

```python
import sys, math

NAME = "standalone__gqa_block_cached__near_ridge"
import os
DBG = int(os.environ.get("DBG", "0"))
OUT = sys.argv[1] if len(sys.argv) > 1 else f"cdna_kernels/{NAME}.s"

HEADER = """; Kernarg layout for this problem (64 bytes, ptrs only, base s[0:1]):
"""


def R(a, n=1):
    return set(range(a, a + n))


def I(x):
    return str(x)


def vr(a, n):
    return f"v{a}" if n == 1 else f"v[{a}:{a+n-1}]"


class Ins:
    __slots__ = ("kind", "wr", "rd", "a", "b", "c", "d", "ws")

    def __init__(self, kind, wr=None, rd=None, a=None, b=None, c=None, d=None):
        self.kind = kind
        self.wr = wr or set()
        self.rd = rd or set()
        self.a, self.b, self.c, self.d = a, b, c, d
        self.ws = 1


VALUISH = ("valu", "trans", "perm", "rfl")


def need(p, c):
    n = 0
    if p.kind == "mfma":
        pd = p.wr
        if c.kind == "mfma":
            if (c.a | c.b) & pd:
                n = max(n, 12)
            if c.c & pd:
                n = max(n, 0 if c.c == pd else 10)
            elif c.wr & pd:
                n = max(n, 10)
        elif c.kind in VALUISH:
            if (c.rd | c.wr) & pd:
                n = max(n, 12)
            if c.wr & p.c:
                n = max(n, 7)
        elif c.kind in ("dsr", "dsw", "vml", "vms"):
            if (c.rd | c.wr) & pd:
                n = max(n, 12)
    elif p.kind in VALUISH:
        if c.kind == "mfma" and (c.a | c.b | c.c) & p.wr:
            n = max(n, 2)
        if p.kind == "trans" and c.kind != "mfma" and (c.rd & p.wr):
            n = max(n, 1)
        if c.kind == "perm" and (c.rd & p.wr):
            n = max(n, 2)
        if c.kind == "rfl" and (c.rd & p.wr):
            n = max(n, 1)
    elif p.kind in ("vms", "dsw"):
        if c.kind in VALUISH and (c.wr & p.rd):
            n = max(n, 2)
    elif p.kind == "m0w":
        if c.kind == "dma":
            n = max(n, 1)
    elif p.kind == "rfl_s":
        pass
    return n


class Prog:
    def __init__(self):
        self.lines = []
        self.hist = []
        self.lds_out = 0
        self.ts = None

    def raw(self, text):
        self.lines.append(text)

    def label(self, l):
        self.lines.append(f"{l}:")
        self.hist = []

    def _emit(self, text, ins):
        dist = 0
        req = 0
        for p in reversed(self.hist):
            r = need(p, ins) - dist
            req = max(req, r)
            dist += p.ws
            if dist > 16:
                break
        while req > 0:
            k = min(req, 8)
            self.lines.append(f"    s_nop {k-1}")
            nop = Ins("nop")
            nop.ws = k
            self.hist.append(nop)
            req -= k
        self.lines.append("    " + text)
        self.hist.append(ins)
        if len(self.hist) > 40:
            self.hist = self.hist[-40:]

    def s(self, text):
        self._emit(text, Ins("salu"))

    def m0(self, text):
        self._emit(text, Ins("m0w"))

    def nop(self, k):
        self.lines.append(f"    s_nop {k-1}")
        nop = Ins("nop")
        nop.ws = k
        self.hist.append(nop)

    def v(self, op, dst, *srcs, kind="valu", ndst=1):
        rd = set()
        ts = []
        for s_ in srcs:
            if isinstance(s_, int):
                rd.add(s_)
                ts.append(f"v{s_}")
            elif isinstance(s_, tuple):
                rd.add(s_[1])
                ts.append(f"-v{s_[1]}")
            else:
                ts.append(s_)
        self._emit(f"{op} {vr(dst, ndst)}, " + ", ".join(ts), Ins(kind, R(dst, ndst), rd))

    def trans(self, op, dst, src):
        self.v(op, dst, src, kind="trans")

    def perm_swap(self, a, b):
        self._emit(f"v_permlane32_swap_b32 v{a}, v{b}", Ins("perm", {a, b}, {a, b}))

    def rfl(self, sdst, src):
        self._emit(f"v_readfirstlane_b32 {sdst}, v{src}", Ins("rfl", set(), {src}))

    def mfma(self, d, a, b, c):
        cs = "0" if c is None else vr(c, 16)
        self._emit(
            f"v_mfma_f32_32x32x16_bf16 {vr(d,16)}, {vr(a,4)}, {vr(b,4)}, {cs}",
            Ins("mfma", R(d, 16), set(), R(a, 4), R(b, 4), set() if c is None else R(c, 16)),
        )

    def ds_read(self, op, dst, n, addr, off):
        assert 0 <= off < 65536, off
        self._emit(f"{op} {vr(dst,n)}, v{addr} offset:{off}", Ins("dsr", R(dst, n), {addr}))
        self.lds_out += 1
        return self.lds_out

    def ds_write128(self, addr, data, off):
        assert 0 <= off < 65536
        self._emit(f"ds_write_b128 v{addr}, {vr(data,4)} offset:{off}", Ins("dsw", set(), {addr} | R(data, 4)))
        self.lds_out += 1

    def lgkm(self, n):
        self._emit(f"s_waitcnt lgkmcnt({min(n,15)})", Ins("wait"))

    def vmcnt(self, n):
        assert n <= 63
        self._emit(f"s_waitcnt vmcnt({n})", Ins("wait"))

    def barrier(self):
        self._emit("s_barrier", Ins("wait"))
        if DBG and self.ts is not None:
            self.stamp()

    def stamp(self):
        self._emit("s_memtime s[60:61]", Ins("salu"))
        self._emit("s_waitcnt lgkmcnt(0)", Ins("wait"))
        self._emit(f"v_writelane_b32 v0, s60, {self.ts}", Ins("valu", {0}, set()))
        self.ts += 1

    def vload4(self, dst, voff, srd, soff, off):
        assert 0 <= off < 4096
        self._emit(
            f"buffer_load_dwordx4 {vr(dst,4)}, v{voff}, s[{srd}:{srd+3}], {soff} offen offset:{off}",
            Ins("vml", R(dst, 4), {voff}),
        )

    def vstore4(self, data, voff, srd, soff, off):
        assert 0 <= off < 4096
        self._emit(
            f"buffer_store_dwordx4 {vr(data,4)}, v{voff}, s[{srd}:{srd+3}], {soff} offen offset:{off}",
            Ins("vms", set(), {voff} | R(data, 4)),
        )

    def dma(self, voff, srd, soff, off):
        assert 0 <= off < 4096
        self._emit(
            f"buffer_load_dwordx4 v{voff}, s[{srd}:{srd+3}], {soff} offen offset:{off} lds",
            Ins("dma", set(), {voff}),
        )


SLOT = 16384
NW = 8
KV0 = 8
NKV = 2
EXCH = KV0 * SLOT
LDS_BYTES = 10 * SLOT
KVSEQ = [("K", 0), ("K", 1)]
for t in range(2, 8):
    KVSEQ += [("V", t - 2), ("K", t)]
KVSEQ += [("V", 6), ("V", 7)]
assert len(KVSEQ) == 16
NSTEP = 48

sB, sHKV, sWAVE = 20, 21, 22
sX, sK, sV, sWQ, sWO, sWS = 24, 28, 32, 36, 40, 44
sOFF, sPAR, sC, sT0, sT1, sT2 = 48, 49, 50, 51, 52, 53
sMT = 54

vW = 1
vK = 1
vV = 9
vVO = 13
vXO, vER, vSO = 17, 18, 19
vM, vL, vAL, vMC, vT0, vT1, vT2, vT3 = 20, 21, 22, 23, 24, 25, 26, 27
vU0, vU1, vU2, vU3 = 28, 29, 30, 31
ACC = 32
FR = 96
XF = 128
QB = 128
SB = 160
PB = 224
OB = 160
BF = 128

C_SCALE = (128.0 ** -0.5) * math.log2(math.e)


def f32hex(x):
    import struct

    return "0x%08x" % struct.unpack("<I", struct.pack("<f", x))[0]


def srd(p, dst, lo, hi, nrec):
    p.s(f"s_mov_b32 s{dst}, s{lo}")
    p.s(f"s_and_b32 s{dst+1}, s{hi}, 0xffff")
    p.s(f"s_mov_b32 s{dst+2}, {nrec}")
    p.s(f"s_mov_b32 s{dst+3}, 0x00020000")


def add64(p, reg, sval):
    p.s(f"s_add_u32 s{reg}, s{reg}, {sval}")
    p.s(f"s_addc_u32 s{reg+1}, s{reg+1}, 0")


def mfma_stream(p, items, valu, nbuf_ahead):
    nitem = len(items)
    marks = [None] * nitem
    issued = 0

    def issue(i):
        last = None
        for (op, dst, n, addr, off) in items[i]["reads"]:
            last = p.ds_read(op, dst, n, addr, off)
        marks[i] = last

    while issued < min(nbuf_ahead, nitem):
        issue(issued)
        issued += 1
    tot = sum(c for c, _ in valu)
    vi = 0
    done = 0
    for i in range(nitem):
        if marks[i] is not None:
            p.lgkm(p.lds_out - marks[i])
        for extra in items[i].get("pre", []):
            extra()
        p.mfma(*items[i]["mf"])
        if issued < nitem:
            issue(issued)
            issued += 1
        while vi < len(valu) and done < tot * (i + 1) / nitem:
            done += valu[vi][0]
            valu[vi][1]()
            vi += 1
    while vi < len(valu):
        valu[vi][1]()
        vi += 1


def softmax_p(p, t):
    S = SB + 32 * (t & 1)
    P = PB + 16 * (t & 1)
    L = []

    def A(f, c=1):
        L.append((c, f))

    A(lambda: p.v("v_max3_f32", vT0, S, S + 1, S + 2))
    A(lambda: p.v("v_max3_f32", vT1, S + 3, S + 4, S + 5))
    for i in range(6, 30, 4):
        A(lambda i=i: p.v("v_max3_f32", vT0, vT0, S + i, S + i + 1))
        A(lambda i=i: p.v("v_max3_f32", vT1, vT1, S + i + 2, S + i + 3))
    A(lambda: p.v("v_max3_f32", vT0, vT0, S + 30, S + 31))
    A(lambda: p.v("v_max_f32", vT0, vT0, vT1))
    A(lambda: p.v("v_mov_b32", vT1, vT0))
    A(lambda: p.perm_swap(vT0, vT1))
    if t == 0:
        A(lambda: p.v("v_max_f32", vM, vT0, vT1))
    else:
        A(lambda: p.v("v_max3_f32", vT0, vT0, vT1, vM))
        A(lambda: p.v("v_sub_f32", vT1, vM, vT0))
        A(lambda: p.v("v_mul_f32", vT1, f"s{sC}", vT1))
        A(lambda: p.trans("v_exp_f32", vAL, vT1), 4)
        A(lambda: p.v("v_mov_b32", vM, vT0))
    A(lambda: p.v("v_mul_f32", vMC, f"s{sC}", vM))
    first = True
    for g in range(4):
        b0 = S + 8 * g
        for i in range(8):
            A(lambda i=i, b0=b0: p.v("v_fma_f32", b0 + i, b0 + i, f"s{sC}", ("neg", vMC)))
        for i in range(8):
            A(lambda i=i, b0=b0: p.trans("v_exp_f32", b0 + i, b0 + i), 4)
        for i in range(0, 8, 2):
            if first:
                if t == 0:
                    A(lambda b0=b0: p.v("v_mov_b32", vL, b0))
                else:
                    A(lambda b0=b0: p.v("v_fma_f32", vL, vL, vAL, b0))
                A(lambda b0=b0: p.v("v_mov_b32", vT2, b0 + 1))
                first = False
            else:
                A(lambda i=i, b0=b0: p.v("v_add_f32", vL, vL, b0 + i))
                A(lambda i=i, b0=b0: p.v("v_add_f32", vT2, vT2, b0 + i + 1))
        for i in range(4):
            A(lambda i=i, g=g, b0=b0: p.v("v_cvt_pk_bf16_f32", P + 4 * g + i, b0 + 2 * i, b0 + 2 * i + 1))
    A(lambda: p.v("v_add_f32", vL, vL, vT2))
    return L


def rescale(p):
    return [(1, lambda i=i: p.v("v_mul_f32", ACC + i, vAL, ACC + i)) for i in range(64)]


def split_cost(L, frac):
    tot = sum(c for c, _ in L)
    acc = 0
    for k, (c, _) in enumerate(L):
        if acc >= tot * frac:
            return L[:k], L[k:]
        acc += c
    return L, []


def w_items(slot_pair, bfrags, first):
    items = []
    for j in range(2):
        slot = slot_pair[j]
        for mt in range(4):
            a = FR + 16 * j + 4 * mt
            addr = vW + (slot // 4) * 4 + mt
            base = (slot % 4) * SLOT
            reads = [
                ("ds_read_b64_tr_b16", a, 2, addr, base),
                ("ds_read_b64_tr_b16", a + 2, 2, addr, base + 4096),
            ]
            c = None if (first and j == 0) else ACC + 16 * mt
            items.append(dict(reads=reads, mf=(ACC + 16 * mt, a, bfrags[j], c)))
    return items


def lane_parts(p):
    lane, r_, h_, aq = vU0, vU1, vU2, vU3
    p.v("v_mbcnt_lo_u32_b32", lane, "-1", "0")
    p.v("v_mbcnt_hi_u32_b32", lane, "-1", lane)
    p.v("v_lshrrev_b32", h_, I(5), lane)
    p.v("v_bfe_u32", r_, lane, I(2), I(2))
    p.v("v_bfe_u32", aq, lane, I(4), I(1))
    p.v("v_lshlrev_b32", aq, I(2), aq)
    p.v("v_and_b32", vT0, I(1), lane)
    p.v("v_lshlrev_b32", vT0, I(1), vT0)
    p.v("v_or_b32", aq, aq, vT0)
    p.v("v_bfe_u32", vT0, lane, I(1), I(1))
    p.v("v_or_b32", aq, aq, vT0)
    p.v("v_lshlrev_b32", aq, I(3), aq)


def setup_w_addr(p):
    lane_parts(p)
    lane, r_, h_, aq = vU0, vU1, vU2, vU3
    p.v("v_lshlrev_b32", vT0, I(3), h_)
    p.v("v_add_u32", vT0, vT0, r_)
    p.v("v_lshlrev_b32", vT0, I(10), vT0)
    p.v("v_add_u32", vT0, vT0, aq)
    p.s(f"s_lshl_b32 s{sT0}, s{sWAVE}, 8")
    p.v("v_add_u32", vT0, f"s{sT0}", vT0)
    for mt in range(4):
        p.v("v_xor_b32", vT1, I(mt), r_)
        p.v("v_lshlrev_b32", vT1, I(6), vT1)
        p.v("v_add_u32", vW + mt, vT0, vT1)
        p.v("v_add_u32", vW + 4 + mt, I(0x10000), vW + mt)


def setup_kv_addr(p):
    lane_parts(p)
    lane, r_, h_, aq = vU0, vU1, vU2, vU3
    p.v("v_lshlrev_b32", vT0, I(2), h_)
    p.v("v_add_u32", vT0, vT0, r_)
    p.v("v_lshlrev_b32", vT0, I(8), vT0)
    p.v("v_add_u32", vT0, vT0, aq)
    p.v("v_add_u32", vT0, I(KV0 * SLOT), vT0)
    for dt in range(4):
        p.v("v_xor_b32", vT1, I(dt), r_)
        p.v("v_lshlrev_b32", vT1, I(6), vT1)
        p.v("v_add_u32", vV + dt, vT0, vT1)
    p.v("v_and_b32", vT0, I(15), lane)
    p.v("v_xor_b32", vT0, vT0, h_)
    p.v("v_lshlrev_b32", vT0, I(4), vT0)
    p.v("v_and_b32", vT1, I(31), lane)
    p.v("v_lshlrev_b32", vT1, I(8), vT1)
    p.v("v_add_u32", vT1, I(KV0 * SLOT), vT1)
    for ks in range(8):
        p.v("v_xor_b32", vK + ks, I(ks << 5), vT0)
        p.v("v_add_u32", vK + ks, vK + ks, vT1)


def cstep(u):
    return u if u < 16 else 32 + (u - 16)


def gen_compute(p):
    p.label("L_compute")
    lane = vU0
    p.v("v_and_b32", lane, I(63), 0)
    p.s(f"s_lshl_b32 s{sT0}, s{sWAVE}, 13")
    p.s(f"s_and_b32 s{sT1}, s{sWAVE}, 1")
    p.s(f"s_lshl_b32 s{sT1}, s{sT1}, 3")
    for i in range(8):
        p.s(f"s_add_u32 s{sT2}, s{sT1}, {i}")
        p.v("v_xor_b32", vT0 + (i & 3), f"s{sT2}", lane)
        p.v("v_lshlrev_b32", vT0 + (i & 3), I(4), vT0 + (i & 3))
        if i % 4 == 0:
            p.s(f"s_add_u32 s{sOFF}, s{sT0}, {i*1024}")
            p.m0(f"s_add_u32 m0, s{sT0}, {EXCH + i*1024}")
        p.dma(vT0 + (i & 3), sX, f"s{sOFF}", (i & 3) * 1024)
    for j in range(4):
        p.v("v_xor_b32", vVO + j, I(j << 2), lane)
        p.v("v_lshlrev_b32", vVO + j, I(4), vVO + j)
        p.v("v_add_u32", vVO + j, I(j * 7168), vVO + j)
    p.s(f"s_lshl_b32 s{sPAR}, s{sWAVE}, 12")
    p.s(f"s_lshl_b32 s{sT1}, s{sHKV}, 10")
    p.s(f"s_lshl_b32 s{sT2}, s{sWAVE}, 15")
    p.s(f"s_add_u32 s{sT1}, s{sT1}, s{sT2}")
    add64(p, sWQ, f"s{sT1}")
    p.s(f"s_sub_u32 s{sWQ+2}, s{sWQ+2}, s{sT1}")
    p.s(f"s_lshl_b32 s{sT1}, s{sHKV}, 19")
    p.s(f"s_add_u32 s{sT1}, s{sT1}, s{sPAR}")
    add64(p, sWO, f"s{sT1}")
    p.s(f"s_sub_u32 s{sWO+2}, s{sWO+2}, s{sT1}")
    vm = [8]
    pair_end = {}

    def issue_pair(u):
        for n in (2 * u, 2 * u + 1):
            slot = n % NW
            p.m0(f"s_add_u32 m0, s{sPAR}, {slot*SLOT}")
            if n < 32:
                p.s(f"s_mov_b32 s{sOFF}, {n*131072}")
                for j in range(4):
                    p.dma(vVO + j, sWQ, f"s{sOFF}", j * 1024)
            else:
                p.s(f"s_mov_b32 s{sOFF}, {(n-32)*16384}")
                for j in range(4):
                    p.dma(vVO + j, sWO, f"s{sOFF}", j * 1024)
            vm[0] += 4
        pair_end[u] = vm[0]
        if u == 15:
            for j in range(1, 4):
                p.v("v_subrev_u32", vVO + j, I(j * 7168), vVO + j)

    def wait_pair(step):
        us = [u for u in range(32) if cstep(u) == step]
        if us:
            p.vmcnt(vm[0] - pair_end[us[0]])

    def refill(s):
        for u in range(4, 32):
            if cstep(u - 4) == s - 1:
                issue_pair(u)

    for u in range(4):
        issue_pair(u)
    setup_w_addr(p)
    lane, h_ = vU0, vU2
    p.v("v_and_b32", vT0, I(15), lane)
    p.v("v_xor_b32", vT0, vT0, h_)
    p.v("v_lshlrev_b32", vT0, I(4), vT0)
    p.v("v_and_b32", vT1, I(31), lane)
    p.v("v_lshlrev_b32", vT1, I(10), vT1)
    p.v("v_add_u32", vT1, I(EXCH), vT1)
    for ks in range(8):
        p.v("v_xor_b32", FR + ks, I(ks << 5), vT0)
        p.v("v_add_u32", FR + ks, FR + ks, vT1)
    p.v("v_lshlrev_b32", vSO, I(4), lane)
    p.v("v_add_u32", vER, I(EXCH), vSO)
    p.s(f"s_lshl_b32 s{sT0}, s{sWAVE}, 14")
    p.v("v_add_u32", vSO, f"s{sT0}", vSO)
    p.s(f"s_lshl_b32 s{sT0}, s{sWAVE}, 13")
    p.v("v_add_u32", vXO, f"s{sT0}", vER)
    p.s(f"s_mov_b32 s{sC}, {f32hex(C_SCALE)}")
    for mt in range(4):
        p.s(f"s_mov_b32 s{sMT+mt}, {mt*4096}")
    if DBG:
        p.ts = 0
        p.stamp()
    p.vmcnt(vm[0] - 8)
    p.barrier()
    for ks in range(32):
        p.ds_read("ds_read_b128", XF + 4 * ks, 4, FR + (ks & 7), (ks >> 3) * 256)
    wait_pair(0)
    p.lgkm(0)

    for a in range(16):
        p.barrier()
        refill(a)
        slots = ((2 * a) % NW, (2 * a + 1) % NW)
        items = w_items(slots, (XF + 8 * a, XF + 8 * a + 4), a == 0)
        mfma_stream(p, items, [], 7)
        wait_pair(a + 1)
        p.lgkm(0)
    setup_kv_addr(p)
    for i in range(32):
        p.v("v_cvt_pk_bf16_f32", QB + i, ACC + 2 * i, ACC + 2 * i + 1)

    carry = []
    for si, (kind, t) in enumerate(KVSEQ):
        p.barrier()
        refill(16 + si)
        base = (si % NKV) * SLOT
        items = []
        fi = 0
        if kind == "K":
            S = SB + 32 * (t & 1)
            for ks in range(8):
                for kt in range(2):
                    f = FR + 4 * (fi % 8)
                    fi += 1
                    reads = [("ds_read_b128", f, 4, vK + ks, base + kt * 8192)]
                    c = None if ks == 0 else S + 16 * kt
                    items.append(dict(reads=reads, mf=(S + 16 * kt, f, QB + 4 * ks, c)))
            if t == 1:
                valu = softmax_p(p, 0)
            elif t >= 2:
                valu = rescale(p) + carry
            else:
                valu = []
            carry = []
            mfma_stream(p, items, valu, 8)
        else:
            P = PB + 16 * (t & 1)
            for ks in range(4):
                for dt in range(4):
                    f = FR + 4 * (fi % 8)
                    fi += 1
                    reads = [
                        ("ds_read_b64_tr_b16", f, 2, vV + dt, base + ks * 4096),
                        ("ds_read_b64_tr_b16", f + 2, 2, vV + dt, base + ks * 4096 + 2048),
                    ]
                    c = None if (t == 0 and ks == 0) else ACC + 16 * dt
                    items.append(dict(reads=reads, mf=(ACC + 16 * dt, f, P + 4 * ks, c)))
            if t == 7:
                items[0]["pre"] = [f for _, f in rescale(p)]
                valu = []
            elif t == 6:
                valu = softmax_p(p, 7)
            else:
                valu, carry = split_cost(softmax_p(p, t + 1), SPLIT)
            mfma_stream(p, items, valu, 7)
        p.lgkm(0)
    p.v("v_mov_b32", vT0, vL)
    p.v("v_mov_b32", vT1, vL)
    p.perm_swap(vT0, vT1)
    p.v("v_add_f32", vT0, vT0, vT1)
    p.trans("v_rcp_f32", vT0, vT0)
    for i in range(32):
        p.v("v_mul_f32", ACC + 2 * i, vT0, ACC + 2 * i)
        p.v("v_mul_f32", ACC + 2 * i + 1, vT0, ACC + 2 * i + 1)
        p.v("v_cvt_pk_bf16_f32", OB + i, ACC + 2 * i, ACC + 2 * i + 1)
    p.barrier()
    for kk in range(8):
        p.ds_write128(vXO, OB + 4 * kk, kk * 1024)
    setup_w_addr(p)
    wait_pair(32)
    p.lgkm(0)
    for d in range(16):
        p.barrier()
        refill(32 + d)
        n0 = 32 + 2 * d
        slots = (n0 % NW, (n0 + 1) % NW)
        bf = BF + 8 * (d & 1)
        p.ds_read("ds_read_b128", bf, 4, vER, (2 * d) * 1024)
        p.ds_read("ds_read_b128", bf + 4, 4, vER, (2 * d + 1) * 1024)
        items = w_items(slots, (bf, bf + 4), d == 0)
        mfma_stream(p, items, [], 6)
        if d < 15:
            wait_pair(33 + d)
            p.lgkm(0)
    for mt in range(4):
        for j in range(4):
            p.vstore4(ACC + 16 * mt + 4 * j, vSO, sWS, f"s{sMT+mt}", j * 1024)
    if DBG:
        p.stamp()
        p.vmcnt(0)
        p.stamp()
        p.ts = None
        p.s(f"s_cmp_lg_u32 s2, {DBG-1}")
        p.s("s_cbranch_scc1 L_exit")
        p.s(f"s_cmp_lg_u32 s{sWAVE}, 0")
        p.s("s_cbranch_scc1 L_exit")
        srd(p, 64, 16, 17, 256)
        p.v("v_mbcnt_lo_u32_b32", 1, "-1", "0")
        p.v("v_mbcnt_hi_u32_b32", 1, "-1", 1)
        p.v("v_lshlrev_b32", 1, I(2), 1)
        p.raw("    buffer_store_dword v0, v1, s[64:67], 0 offen")
    p.s("s_endpgm")


RING = 60
RB = 12
SPLIT = 0.62


class Loader:
    def __init__(self, p, nunits, load_fn, lds_addr_fn):
        self.p = p
        self.n = nunits
        self.load_fn = load_fn
        self.lds_addr_fn = lds_addr_fn
        self.issued = 0
        self.written = 0

    def reg(self, u):
        return RB + 4 * (u % RING)

    def issue_upto(self, lim):
        lim = min(lim, self.n, self.written + RING)
        while self.issued < lim:
            self.load_fn(self.issued, self.reg(self.issued))
            self.issued += 1

    def write_units(self, cnt):
        p = self.p
        end = self.written + cnt
        p.vmcnt(min(63, self.issued - end))
        while self.written < end:
            u = self.written
            addr = self.lds_addr_fn(u)
            p.ds_write128(9 + addr // 65536, self.reg(u), addr % 65536)
            self.written += 1
        p.lgkm(0)


def gen_kvloader(p):
    p.label("L_kvload")
    L = 9
    p.v("v_and_b32", L, I(63), 0)
    p.v("v_lshrrev_b32", 11, I(4), L)
    p.v("v_and_b32", 12, I(15), L)
    p.v("v_lshlrev_b32", 13, I(8), 11)
    for j in range(4):
        p.v("v_add_u32", 14, I(4 * j), 11)
        p.v("v_xor_b32", 14, 14, 12)
        p.v("v_lshlrev_b32", 14, I(4), 14)
        p.v("v_add_u32", 1 + j, 14, 13)
    p.v("v_lshlrev_b32", 14, I(2), 11)
    p.v("v_xor_b32", 14, 14, 12)
    p.v("v_lshlrev_b32", 14, I(4), 14)
    p.v("v_add_u32", 5, 14, 13)
    p.s(f"s_and_b32 s{sT0}, s{sWAVE}, 3")
    p.s(f"s_lshl_b32 s{sPAR}, s{sT0}, 12")
    p.v("v_lshlrev_b32", 9, I(4), L)
    p.v("v_add_u32", 9, f"s{sPAR}", 9)
    p.v("v_add_u32", 10, I(65536), 9)
    p.v("v_add_u32", 11, I(131072), 9)
    add64(p, sK, f"s{sPAR}")
    p.s(f"s_sub_u32 s{sK+2}, s{sK+2}, s{sPAR}")
    add64(p, sV, f"s{sPAR}")
    p.s(f"s_sub_u32 s{sV+2}, s{sV+2}, s{sPAR}")

    def load_fn(unit, dst):
        i, j = unit // 4, unit % 4
        kind, t = KVSEQ[i]
        if j == 0:
            p.s(f"s_mov_b32 s{sOFF}, {t*16384}")
        if kind == "K":
            p.vload4(dst, 1 + j, sK, f"s{sOFF}", j * 1024)
        else:
            p.vload4(dst, 5, sV, f"s{sOFF}", j * 1024)

    def lds_fn(unit):
        i, j = unit // 4, unit % 4
        return (KV0 + i % NKV) * SLOT + j * 1024

    ld = Loader(p, 64, load_fn, lds_fn)
    ld.issue_upto(4 * KV_PRE)
    p.barrier()
    for s in range(NSTEP):
        p.barrier()
        if s < 16:
            ld.issue_upto(4 * (KV_PRE + (s + 1) * KV_RATE))
        if s in (11, 14):
            ld.write_units(4)
        i = s - 16 + 1
        if 2 <= i < 16:
            ld.write_units(4)
            ld.issue_upto(64)
        if s == 31:
            p.barrier()
    p.s("s_endpgm")


KV_PRE = 1
KV_RATE = 1


def gen_main():
    p = Prog()
    p.raw(".text")
    p.raw(f".globl {NAME}_kernel")
    p.raw(".p2align 8")
    p.raw(f".type {NAME}_kernel,@function")
    p.label(f"{NAME}_kernel")
    p.s("s_cmp_ge_u32 s2, 256")
    p.s("s_cbranch_scc1 L_exit")
    p.s("s_load_dwordx16 s[4:19], s[0:1], 0")
    p.s(f"s_and_b32 s{sHKV}, s2, 7")
    p.s(f"s_lshr_b32 s{sB}, s2, 3")
    p.v("v_lshrrev_b32", 1, I(6), 0)
    p.rfl(f"s{sWAVE}", 1)
    p.s("s_waitcnt lgkmcnt(0)")
    srd(p, sX, 4, 5, 32768)
    srd(p, sK, 6, 7, 131072)
    srd(p, sV, 8, 9, 131072)
    srd(p, sWQ, 10, 11, 4194304)
    srd(p, sWO, 12, 13, 4194304)
    srd(p, sWS, 18, 19, 65536)
    p.s(f"s_lshl_b32 s{sT0}, s{sB}, 15")
    add64(p, sX, f"s{sT0}")
    p.s(f"s_lshl_b32 s{sT0}, s2, 17")
    add64(p, sK, f"s{sT0}")
    add64(p, sV, f"s{sT0}")
    p.s(f"s_lshl_b32 s{sT0}, s{sHKV}, 5")
    p.s(f"s_add_u32 s{sT0}, s{sT0}, s{sB}")
    p.s(f"s_lshl_b32 s{sT0}, s{sT0}, 16")
    add64(p, sWS, f"s{sT0}")
    p.s(f"s_cmp_ge_u32 s{sWAVE}, 4")
    p.s("s_cbranch_scc1 L_kvload")
    gen_compute(p)
    gen_kvloader(p)
    p.label("L_exit")
    p.s("s_endpgm")
    return p


def gen_reduce():
    p = Prog()
    p.raw(".globl gqa_reduce_kernel")
    p.raw(".p2align 8")
    p.raw(".type gqa_reduce_kernel,@function")
    p.label("gqa_reduce_kernel")
    p.s("s_cmp_ge_u32 s2, 256")
    p.s("s_cbranch_scc1 L_rexit")
    p.s("s_load_dwordx2 s[4:5], s[0:1], 40")
    p.s("s_load_dwordx2 s[6:7], s[0:1], 56")
    p.v("v_lshrrev_b32", 1, I(6), 0)
    p.v("v_and_b32", 2, I(63), 0)
    p.s("s_lshl_b32 s3, s2, 2")
    p.v("v_add_u32", 1, "s3", 1)
    p.v("v_lshlrev_b32", 3, I(11), 1)
    p.v("v_lshlrev_b32", 4, I(4), 2)
    p.v("v_add_u32", 3, 3, 4)
    p.v("v_lshrrev_b32", 5, I(5), 1)
    p.v("v_lshlrev_b32", 5, I(5), 5)
    p.v("v_and_b32", 6, I(31), 2)
    p.v("v_add_u32", 5, 5, 6)
    p.v("v_lshlrev_b32", 5, I(10), 5)
    p.v("v_and_b32", 6, I(31), 1)
    p.v("v_lshlrev_b32", 6, I(5), 6)
    p.v("v_add_u32", 5, 5, 6)
    p.v("v_lshrrev_b32", 6, I(5), 2)
    p.v("v_lshlrev_b32", 6, I(4), 6)
    p.v("v_add_u32", 5, 5, 6)
    p.s("s_waitcnt lgkmcnt(0)")
    srd(p, 8, 4, 5, 1048576)
    srd(p, 12, 6, 7, 16777216)
    for hk in range(8):
        p.s(f"s_mov_b32 s{16+hk}, {hk*2097152}")
    for hk in range(8):
        p.vload4(8 + 8 * hk, 3, 12, f"s{16+hk}", 0)
        p.vload4(12 + 8 * hk, 3, 12, f"s{16+hk}", 1024)
    for hk in range(1, 8):
        p.vmcnt(14 - 2 * hk)
        for e in range(8):
            p.v("v_add_f32", 8 + e, 8 + e, 8 + 8 * hk + e)
    for e in range(4):
        p.v("v_cvt_pk_bf16_f32", 80 + e, 8 + 2 * e, 9 + 2 * e)
    p.vstore4(80, 5, 8, "0", 0)
    p.label("L_rexit")
    p.s("s_endpgm")
    return p


def kd(name, vgpr):
    return f""".amdhsa_kernel {name}
  .amdhsa_next_free_vgpr {vgpr}
  .amdhsa_next_free_sgpr 102
  .amdhsa_accum_offset {vgpr}
  .amdhsa_group_segment_fixed_size 0
  .amdhsa_kernarg_size 64
  .amdhsa_user_sgpr_count 2
  .amdhsa_user_sgpr_kernarg_segment_ptr 1
  .amdhsa_system_sgpr_workgroup_id_x 1
.end_amdhsa_kernel
"""


def main():
    m = gen_main()
    r = gen_reduce()
    txt = HEADER
    txt += f"; @launch kernel={NAME}_kernel grid=(256,1,1) block=(512,1,1) lds={LDS_BYTES}\n"
    txt += "; @launch kernel=gqa_reduce_kernel grid=(256,1,1) block=(256,1,1) lds=0\n"
    txt += '.amdgcn_target "amdgcn-amd-amdhsa--gfx950"\n'
    txt += "\n".join(m.lines) + "\n"
    txt += "\n".join(r.lines) + "\n"
    txt += '.section .rodata,"a"\n.p2align 6\n'
    txt += kd(f"{NAME}_kernel", 256)
    txt += ".p2align 6\n"
    txt += kd("gqa_reduce_kernel", 88)
    open(OUT, "w").write(txt)
    print("wrote", OUT, len(txt), "bytes", len(m.lines), "lines")


main()
```

```python
import sys, math

NAME = "standalone__gqa_block_cached__near_ridge"
import os
DBG = int(os.environ.get("DBG", "0"))
OUT = sys.argv[1] if len(sys.argv) > 1 else f"cdna_kernels/{NAME}.s"

HEADER = """; Kernarg layout for this problem (64 bytes, ptrs only, base s[0:1]):
"""


def R(a, n=1):
    return set(range(a, a + n))


def I(x):
    return str(x)


def vr(a, n):
    return f"v{a}" if n == 1 else f"v[{a}:{a+n-1}]"


class Ins:
    __slots__ = ("kind", "wr", "rd", "a", "b", "c", "d", "ws")

    def __init__(self, kind, wr=None, rd=None, a=None, b=None, c=None, d=None):
        self.kind = kind
        self.wr = wr or set()
        self.rd = rd or set()
        self.a, self.b, self.c, self.d = a, b, c, d
        self.ws = 1


VALUISH = ("valu", "trans", "perm", "rfl")


def need(p, c):
    n = 0
    if p.kind == "mfma":
        pd = p.wr
        if c.kind == "mfma":
            if (c.a | c.b) & pd:
                n = max(n, 12)
            if c.c & pd:
                n = max(n, 0 if c.c == pd else 10)
            elif c.wr & pd:
                n = max(n, 10)
        elif c.kind in VALUISH:
            if (c.rd | c.wr) & pd:
                n = max(n, 12)
            if c.wr & p.c:
                n = max(n, 7)
        elif c.kind in ("dsr", "dsw", "vml", "vms"):
            if (c.rd | c.wr) & pd:
                n = max(n, 12)
    elif p.kind in VALUISH:
        if c.kind == "mfma" and (c.a | c.b | c.c) & p.wr:
            n = max(n, 2)
        if p.kind == "trans" and c.kind != "mfma" and (c.rd & p.wr):
            n = max(n, 1)
        if c.kind == "perm" and (c.rd & p.wr):
            n = max(n, 2)
        if c.kind == "rfl" and (c.rd & p.wr):
            n = max(n, 1)
    elif p.kind in ("vms", "dsw"):
        if c.kind in VALUISH and (c.wr & p.rd):
            n = max(n, 2)
    elif p.kind == "m0w":
        if c.kind == "dma":
            n = max(n, 1)
    elif p.kind == "rfl_s":
        pass
    return n


class Prog:
    def __init__(self):
        self.lines = []
        self.hist = []
        self.lds_out = 0
        self.ts = None

    def raw(self, text):
        self.lines.append(text)

    def label(self, l):
        self.lines.append(f"{l}:")
        self.hist = []

    def _emit(self, text, ins):
        dist = 0
        req = 0
        for p in reversed(self.hist):
            r = need(p, ins) - dist
            req = max(req, r)
            dist += p.ws
            if dist > 16:
                break
        while req > 0:
            k = min(req, 8)
            self.lines.append(f"    s_nop {k-1}")
            nop = Ins("nop")
            nop.ws = k
            self.hist.append(nop)
            req -= k
        self.lines.append("    " + text)
        self.hist.append(ins)
        if len(self.hist) > 40:
            self.hist = self.hist[-40:]

    def s(self, text):
        self._emit(text, Ins("salu"))

    def m0(self, text):
        self._emit(text, Ins("m0w"))

    def nop(self, k):
        self.lines.append(f"    s_nop {k-1}")
        nop = Ins("nop")
        nop.ws = k
        self.hist.append(nop)

    def v(self, op, dst, *srcs, kind="valu", ndst=1):
        rd = set()
        ts = []
        for s_ in srcs:
            if isinstance(s_, int):
                rd.add(s_)
                ts.append(f"v{s_}")
            elif isinstance(s_, tuple):
                rd.add(s_[1])
                ts.append(f"-v{s_[1]}")
            else:
                ts.append(s_)
        self._emit(f"{op} {vr(dst, ndst)}, " + ", ".join(ts), Ins(kind, R(dst, ndst), rd))

    def trans(self, op, dst, src):
        self.v(op, dst, src, kind="trans")

    def perm_swap(self, a, b):
        self._emit(f"v_permlane32_swap_b32 v{a}, v{b}", Ins("perm", {a, b}, {a, b}))

    def rfl(self, sdst, src):
        self._emit(f"v_readfirstlane_b32 {sdst}, v{src}", Ins("rfl", set(), {src}))

    def mfma(self, d, a, b, c):
        cs = "0" if c is None else vr(c, 16)
        self._emit(
            f"v_mfma_f32_32x32x16_bf16 {vr(d,16)}, {vr(a,4)}, {vr(b,4)}, {cs}",
            Ins("mfma", R(d, 16), set(), R(a, 4), R(b, 4), set() if c is None else R(c, 16)),
        )

    def ds_read(self, op, dst, n, addr, off):
        assert 0 <= off < 65536, off
        self._emit(f"{op} {vr(dst,n)}, v{addr} offset:{off}", Ins("dsr", R(dst, n), {addr}))
        self.lds_out += 1
        return self.lds_out

    def ds_write128(self, addr, data, off):
        assert 0 <= off < 65536
        self._emit(f"ds_write_b128 v{addr}, {vr(data,4)} offset:{off}", Ins("dsw", set(), {addr} | R(data, 4)))
        self.lds_out += 1

    def lgkm(self, n):
        self._emit(f"s_waitcnt lgkmcnt({min(n,15)})", Ins("wait"))

    def vmcnt(self, n):
        assert n <= 63
        self._emit(f"s_waitcnt vmcnt({n})", Ins("wait"))

    def barrier(self):
        self._emit("s_barrier", Ins("wait"))
        if DBG and self.ts is not None:
            self.stamp()

    def stamp(self):
        self._emit("s_memtime s[60:61]", Ins("salu"))
        self._emit("s_waitcnt lgkmcnt(0)", Ins("wait"))
        self._emit(f"v_writelane_b32 v0, s60, {self.ts}", Ins("valu", {0}, set()))
        self.ts += 1

    def vload4(self, dst, voff, srd, soff, off, mod=""):
        assert 0 <= off < 4096
        self._emit(
            f"buffer_load_dwordx4 {vr(dst,4)}, v{voff}, s[{srd}:{srd+3}], {soff} offen offset:{off}{mod}",
            Ins("vml", R(dst, 4), {voff}),
        )

    def vstore4(self, data, voff, srd, soff, off):
        assert 0 <= off < 4096
        self._emit(
            f"buffer_store_dwordx4 {vr(data,4)}, v{voff}, s[{srd}:{srd+3}], {soff} offen offset:{off}",
            Ins("vms", set(), {voff} | R(data, 4)),
        )

    def dma(self, voff, srd, soff, off):
        assert 0 <= off < 4096
        self._emit(
            f"buffer_load_dwordx4 v{voff}, s[{srd}:{srd+3}], {soff} offen offset:{off} lds",
            Ins("dma", set(), {voff}),
        )


SLOT = 16384
NW = 8
KV0 = 8
NKV = 2
EXCH = KV0 * SLOT
LDS_BYTES = 10 * SLOT
KVSEQ = [("K", 0), ("K", 1)]
for t in range(2, 8):
    KVSEQ += [("V", t - 2), ("K", t)]
KVSEQ += [("V", 6), ("V", 7)]
assert len(KVSEQ) == 16
NSTEP = 48

sB, sHKV, sWAVE = 20, 21, 22
sX, sK, sV, sWQ, sWO, sWS = 24, 28, 32, 36, 40, 44
sOFF, sPAR, sC, sT0, sT1, sT2 = 48, 49, 50, 51, 52, 53
sMT = 54
sROT = 58

vW = 1
vK = 1
vV = 9
vVO = 13
vXO, vER, vSO = 17, 18, 19
vM, vL, vAL, vMC, vT0, vT1, vT2, vT3 = 20, 21, 22, 23, 24, 25, 26, 27
vU0, vU1, vU2, vU3 = 28, 29, 30, 31
ACC = 32
FR = 96
XF = 128
QB = 128
SB = 160
PB = 224
OB = 160
BF = 128

C_SCALE = (128.0 ** -0.5) * math.log2(math.e)


def f32hex(x):
    import struct

    return "0x%08x" % struct.unpack("<I", struct.pack("<f", x))[0]


def srd(p, dst, lo, hi, nrec):
    p.s(f"s_mov_b32 s{dst}, s{lo}")
    p.s(f"s_and_b32 s{dst+1}, s{hi}, 0xffff")
    p.s(f"s_mov_b32 s{dst+2}, {nrec}")
    p.s(f"s_mov_b32 s{dst+3}, 0x00020000")


def add64(p, reg, sval):
    p.s(f"s_add_u32 s{reg}, s{reg}, {sval}")
    p.s(f"s_addc_u32 s{reg+1}, s{reg+1}, 0")


def mfma_stream(p, items, valu, nbuf_ahead, grp=2, head=0):
    nitem = len(items)
    marks = [None] * nitem
    issued = 0
    if os.environ.get("NOVALU"):
        valu = []

    def issue(i):
        last = None
        for (op, dst, n, addr, off) in items[i]["reads"]:
            last = p.ds_read(op, dst, n, addr, off)
        marks[i] = last

    while issued < min(nbuf_ahead, nitem):
        issue(issued)
        issued += 1
    tot = sum(c for c, _ in valu)
    vi = 0
    done = 0
    while vi < len(valu) and done < head:
        done += valu[vi][0]
        valu[vi][1]()
        vi += 1
    base = done
    for i in range(nitem):
        if i % grp == 0:
            j = min(i + grp, nitem) - 1
            assert marks[j] is not None
            p.lgkm(p.lds_out - marks[j])
        for extra in items[i].get("pre", []):
            extra()
        if not (os.environ.get("NOMFMA") and valu):
            p.mfma(*items[i]["mf"])
        if i % grp == grp - 1:
            while issued < nitem and issued <= i + nbuf_ahead:
                issue(issued)
                issued += 1
        while vi < len(valu) and done < base + (tot - base) * (i + 1) / nitem:
            done += valu[vi][0]
            valu[vi][1]()
            vi += 1
    while vi < len(valu):
        valu[vi][1]()
        vi += 1


def softmax_p(p, t):
    S = SB + 32 * (t & 1)
    P = PB + 16 * (t & 1)
    L = []

    def A(f, c=1):
        L.append((c, f))

    A(lambda: p.v("v_max3_f32", vT0, S, S + 1, S + 2))
    A(lambda: p.v("v_max3_f32", vT1, S + 3, S + 4, S + 5))
    for i in range(6, 30, 4):
        A(lambda i=i: p.v("v_max3_f32", vT0, vT0, S + i, S + i + 1))
        A(lambda i=i: p.v("v_max3_f32", vT1, vT1, S + i + 2, S + i + 3))
    A(lambda: p.v("v_max3_f32", vT0, vT0, S + 30, S + 31))
    A(lambda: p.v("v_max_f32", vT0, vT0, vT1))
    A(lambda: p.v("v_mov_b32", vT1, vT0))
    A(lambda: p.perm_swap(vT0, vT1))
    if t == 0:
        A(lambda: p.v("v_max_f32", vM, vT0, vT1))
    else:
        A(lambda: p.v("v_max3_f32", vT0, vT0, vT1, vM))
        A(lambda: p.v("v_sub_f32", vT1, vM, vT0))
        A(lambda: p.v("v_mul_f32", vT1, f"s{sC}", vT1))
        A(lambda: p.trans("v_exp_f32", vAL, vT1), 2)
        A(lambda: p.v("v_mov_b32", vM, vT0))
    A(lambda: p.v("v_mul_f32", vMC, f"s{sC}", vM))
    first = True
    for g in range(4):
        b0 = S + 8 * g
        for i in range(8):
            A(lambda i=i, b0=b0: p.v("v_fma_f32", b0 + i, b0 + i, f"s{sC}", ("neg", vMC)))
        for i in range(8):
            A(lambda i=i, b0=b0: p.trans("v_exp_f32", b0 + i, b0 + i), 2)
        for i in range(0, 8, 2):
            if first:
                if t == 0:
                    A(lambda b0=b0: p.v("v_mov_b32", vL, b0))
                else:
                    A(lambda b0=b0: p.v("v_fma_f32", vL, vL, vAL, b0))
                A(lambda b0=b0: p.v("v_mov_b32", vT2, b0 + 1))
                first = False
            else:
                A(lambda i=i, b0=b0: p.v("v_add_f32", vL, vL, b0 + i))
                A(lambda i=i, b0=b0: p.v("v_add_f32", vT2, vT2, b0 + i + 1))
        for i in range(4):
            A(lambda i=i, g=g, b0=b0: p.v("v_cvt_pk_bf16_f32", P + 4 * g + i, b0 + 2 * i, b0 + 2 * i + 1))
    A(lambda: p.v("v_add_f32", vL, vL, vT2))
    return L


def rescale(p):
    return [(1, lambda i=i: p.v("v_mul_f32", ACC + i, vAL, ACC + i)) for i in range(64)]


def split_cost(L, frac):
    tot = sum(c for c, _ in L)
    acc = 0
    for k, (c, _) in enumerate(L):
        if acc >= tot * frac:
            return L[:k], L[k:]
        acc += c
    return L, []


def w_items(slot_pair, bfrags, first):
    items = []
    for j in range(2):
        slot = slot_pair[j]
        for mt in range(4):
            a = FR + 16 * j + 4 * mt
            addr = vW + (slot // 4) * 4 + mt
            base = (slot % 4) * SLOT
            reads = [
                ("ds_read_b64_tr_b16", a, 2, addr, base),
                ("ds_read_b64_tr_b16", a + 2, 2, addr, base + 4096),
            ]
            c = None if (first and j == 0) else ACC + 16 * mt
            items.append(dict(reads=reads, mf=(ACC + 16 * mt, a, bfrags[j], c)))
    return items


def lane_parts(p):
    lane, r_, h_, aq = vU0, vU1, vU2, vU3
    p.v("v_mbcnt_lo_u32_b32", lane, "-1", "0")
    p.v("v_mbcnt_hi_u32_b32", lane, "-1", lane)
    p.v("v_lshrrev_b32", h_, I(5), lane)
    p.v("v_bfe_u32", r_, lane, I(2), I(2))
    p.v("v_bfe_u32", aq, lane, I(4), I(1))
    p.v("v_lshlrev_b32", aq, I(2), aq)
    p.v("v_and_b32", vT0, I(1), lane)
    p.v("v_lshlrev_b32", vT0, I(1), vT0)
    p.v("v_or_b32", aq, aq, vT0)
    p.v("v_bfe_u32", vT0, lane, I(1), I(1))
    p.v("v_or_b32", aq, aq, vT0)
    p.v("v_lshlrev_b32", aq, I(3), aq)


def setup_w_addr(p):
    lane_parts(p)
    lane, r_, h_, aq = vU0, vU1, vU2, vU3
    p.v("v_lshlrev_b32", vT0, I(3), h_)
    p.v("v_add_u32", vT0, vT0, r_)
    p.v("v_lshlrev_b32", vT0, I(10), vT0)
    p.v("v_add_u32", vT0, vT0, aq)
    p.s(f"s_lshl_b32 s{sT0}, s{sWAVE}, 8")
    p.v("v_add_u32", vT0, f"s{sT0}", vT0)
    for mt in range(4):
        p.v("v_xor_b32", vT1, I(mt), r_)
        p.v("v_lshlrev_b32", vT1, I(6), vT1)
        p.v("v_add_u32", vW + mt, vT0, vT1)
        p.v("v_add_u32", vW + 4 + mt, I(0x10000), vW + mt)


def setup_kv_addr(p):
    lane_parts(p)
    lane, r_, h_, aq = vU0, vU1, vU2, vU3
    p.v("v_lshlrev_b32", vT0, I(2), h_)
    p.v("v_add_u32", vT0, vT0, r_)
    p.v("v_lshlrev_b32", vT0, I(8), vT0)
    p.v("v_add_u32", vT0, vT0, aq)
    p.v("v_add_u32", vT0, I(KV0 * SLOT), vT0)
    for dt in range(4):
        p.v("v_xor_b32", vT1, I(dt), r_)
        p.v("v_lshlrev_b32", vT1, I(6), vT1)
        p.v("v_add_u32", vV + dt, vT0, vT1)
    p.v("v_and_b32", vT0, I(15), lane)
    p.v("v_xor_b32", vT0, vT0, h_)
    p.v("v_lshlrev_b32", vT0, I(4), vT0)
    p.v("v_and_b32", vT1, I(31), lane)
    p.v("v_lshlrev_b32", vT1, I(8), vT1)
    p.v("v_add_u32", vT1, I(KV0 * SLOT), vT1)
    for ks in range(8):
        p.v("v_xor_b32", vK + ks, I(ks << 5), vT0)
        p.v("v_add_u32", vK + ks, vK + ks, vT1)


def cstep(u):
    return u if u < 16 else 32 + (u - 16)


def gen_compute(p):
    p.label("L_compute")
    lane = vU0
    p.v("v_and_b32", lane, I(63), 0)
    p.s(f"s_lshl_b32 s{sT0}, s{sWAVE}, 13")
    p.s(f"s_and_b32 s{sT1}, s{sWAVE}, 1")
    p.s(f"s_lshl_b32 s{sT1}, s{sT1}, 3")
    for i in range(8):
        p.s(f"s_add_u32 s{sT2}, s{sT1}, {i}")
        p.v("v_xor_b32", vT0 + (i & 3), f"s{sT2}", lane)
        p.v("v_lshlrev_b32", vT0 + (i & 3), I(4), vT0 + (i & 3))
        if i % 4 == 0:
            p.s(f"s_add_u32 s{sOFF}, s{sT0}, {i*1024}")
            p.m0(f"s_add_u32 m0, s{sT0}, {EXCH + i*1024}")
        p.dma(vT0 + (i & 3), sX, f"s{sOFF}", (i & 3) * 1024)
    for j in range(4):
        p.v("v_xor_b32", vVO + j, I(j << 2), lane)
        p.v("v_lshlrev_b32", vVO + j, I(4), vVO + j)
        p.v("v_add_u32", vVO + j, I(j * 7168), vVO + j)
    p.s(f"s_lshl_b32 s{sPAR}, s{sWAVE}, 12")
    p.s(f"s_lshl_b32 s{sT1}, s{sHKV}, 10")
    p.s(f"s_lshl_b32 s{sT2}, s{sWAVE}, 15")
    p.s(f"s_add_u32 s{sT1}, s{sT1}, s{sT2}")
    add64(p, sWQ, f"s{sT1}")
    p.s(f"s_sub_u32 s{sWQ+2}, s{sWQ+2}, s{sT1}")
    p.s(f"s_lshl_b32 s{sT1}, s{sHKV}, 19")
    p.s(f"s_add_u32 s{sT1}, s{sT1}, s{sPAR}")
    add64(p, sWO, f"s{sT1}")
    p.s(f"s_sub_u32 s{sWO+2}, s{sWO+2}, s{sT1}")
    vm = [8]
    pair_end = {}

    def issue_pair(u):
        for n in (2 * u, 2 * u + 1):
            slot = n % NW
            p.m0(f"s_add_u32 m0, s{sPAR}, {slot*SLOT}")
            if n < 32:
                p.s(f"s_mov_b32 s{sOFF}, {n*131072}")
                for j in range(4):
                    p.dma(vVO + j, sWQ, f"s{sOFF}", j * 1024)
            else:
                p.s(f"s_mov_b32 s{sOFF}, {(n-32)*16384}")
                for j in range(4):
                    p.dma(vVO + j, sWO, f"s{sOFF}", j * 1024)
            vm[0] += 4
        pair_end[u] = vm[0]
        if u == 15:
            for j in range(1, 4):
                p.v("v_subrev_u32", vVO + j, I(j * 7168), vVO + j)

    def wait_pair(step):
        us = [u for u in range(32) if cstep(u) == step]
        if us and us[0] not in REGP:
            p.vmcnt(vm[0] - pair_end[us[0]])

    def refill(s):
        for u in range(4, 32):
            if cstep(u - 4) == s - 1 and u not in REGP:
                issue_pair(u)

    for u in range(4):
        issue_pair(u)
    setup_w_addr(p)
    lane, h_ = vU0, vU2
    p.v("v_and_b32", vT0, I(15), lane)
    p.v("v_xor_b32", vT0, vT0, h_)
    p.v("v_lshlrev_b32", vT0, I(4), vT0)
    p.v("v_and_b32", vT1, I(31), lane)
    p.v("v_lshlrev_b32", vT1, I(10), vT1)
    p.v("v_add_u32", vT1, I(EXCH), vT1)
    for ks in range(8):
        p.v("v_xor_b32", FR + ks, I(ks << 5), vT0)
        p.v("v_add_u32", FR + ks, FR + ks, vT1)
    p.v("v_lshlrev_b32", vSO, I(4), lane)
    p.v("v_add_u32", vER, I(EXCH), vSO)
    p.s(f"s_lshl_b32 s{sT0}, s{sWAVE}, 14")
    p.v("v_add_u32", vSO, f"s{sT0}", vSO)
    p.s(f"s_lshl_b32 s{sT0}, s{sWAVE}, 13")
    p.v("v_add_u32", vXO, f"s{sT0}", vER)
    p.s(f"s_mov_b32 s{sC}, {f32hex(C_SCALE)}")
    for mt in range(4):
        p.s(f"s_mov_b32 s{sMT+mt}, {mt*4096}")
    if DBG:
        p.ts = 0
        p.stamp()
    p.vmcnt(vm[0] - 8)
    p.barrier()
    for ks in range(32):
        p.ds_read("ds_read_b128", XF + 4 * ks, 4, FR + (ks & 7), (ks >> 3) * 256)
    wait_pair(0)
    p.lgkm(0)

    for a in range(16):
        p.barrier()
        refill(a)
        slots = ((2 * a) % NW, (2 * a + 1) % NW)
        items = w_items(slots, (XF + 8 * a, XF + 8 * a + 4), a == 0)
        mfma_stream(p, items, [], 7, grp=1)
        wait_pair(a + 1)
        p.lgkm(0)
    setup_kv_addr(p)
    for i in range(32):
        p.v("v_cvt_pk_bf16_f32", QB + i, ACC + 2 * i, ACC + 2 * i + 1)

    carry = []
    for si, (kind, t) in enumerate(KVSEQ):
        p.barrier()
        refill(16 + si)
        base = (si % NKV) * SLOT
        items = []
        fi = 0
        if kind == "K":
            S = SB + 32 * (t & 1)
            for ks in range(8):
                for kt in range(2):
                    f = FR + 4 * (fi % 8)
                    fi += 1
                    reads = [("ds_read_b128", f, 4, vK + ks, base + kt * 8192)]
                    c = None if ks == 0 else S + 16 * kt
                    items.append(dict(reads=reads, mf=(S + 16 * kt, f, QB + 4 * ks, c)))
            if t == 1:
                valu = softmax_p(p, 0)
            elif t >= 2:
                valu = rescale(p) + carry
            else:
                valu = []
            carry = []
            mfma_stream(p, items, valu, 8, grp=2, head=HEAD)
        else:
            P = PB + 16 * (t & 1)
            for ks in range(4):
                for dt in range(4):
                    f = FR + 4 * (fi % 8)
                    fi += 1
                    reads = [
                        ("ds_read_b64_tr_b16", f, 2, vV + dt, base + ks * 4096),
                        ("ds_read_b64_tr_b16", f + 2, 2, vV + dt, base + ks * 4096 + 2048),
                    ]
                    c = None if (t == 0 and ks == 0) else ACC + 16 * dt
                    items.append(dict(reads=reads, mf=(ACC + 16 * dt, f, P + 4 * ks, c)))
            if t == 7:
                items[0]["pre"] = [f for _, f in rescale(p)]
                valu = []
            elif t == 6:
                valu = softmax_p(p, 7)
            else:
                valu, carry = split_cost(softmax_p(p, t + 1), SPLIT)
            mfma_stream(p, items, valu, 6, grp=2, head=HEAD)
        p.lgkm(0)
    p.v("v_mov_b32", vT0, vL)
    p.v("v_mov_b32", vT1, vL)
    p.perm_swap(vT0, vT1)
    p.v("v_add_f32", vT0, vT0, vT1)
    p.trans("v_rcp_f32", vT0, vT0)
    for i in range(32):
        p.v("v_mul_f32", ACC + 2 * i, vT0, ACC + 2 * i)
        p.v("v_mul_f32", ACC + 2 * i + 1, vT0, ACC + 2 * i + 1)
        p.v("v_cvt_pk_bf16_f32", OB + i, ACC + 2 * i, ACC + 2 * i + 1)
    p.barrier()
    for kk in range(8):
        p.ds_write128(vXO, OB + 4 * kk, kk * 1024)
    setup_w_addr(p)
    wait_pair(32)
    p.lgkm(0)
    for d in range(16):
        p.barrier()
        refill(32 + d)
        n0 = 32 + 2 * d
        slots = (n0 % NW, (n0 + 1) % NW)
        bf = BF + 8 * (d & 1)
        p.ds_read("ds_read_b128", bf, 4, vER, (2 * d) * 1024)
        p.ds_read("ds_read_b128", bf + 4, 4, vER, (2 * d + 1) * 1024)
        items = w_items(slots, (bf, bf + 4), d == 0)
        mfma_stream(p, items, [], 6, grp=1)
        if d < 15:
            wait_pair(33 + d)
            p.lgkm(0)
    for mt in range(4):
        for j in range(4):
            p.vstore4(ACC + 16 * mt + 4 * j, vSO, sWS, f"s{sMT+mt}", j * 1024)
    if DBG:
        p.stamp()
        p.vmcnt(0)
        p.stamp()
        p.ts = None
        p.s(f"s_cmp_lg_u32 s2, {DBG-1}")
        p.s("s_cbranch_scc1 L_exit")
        p.s(f"s_cmp_lg_u32 s{sWAVE}, 0")
        p.s("s_cbranch_scc1 L_exit")
        srd(p, 64, 16, 17, 256)
        p.v("v_mbcnt_lo_u32_b32", 1, "-1", "0")
        p.v("v_mbcnt_hi_u32_b32", 1, "-1", 1)
        p.v("v_lshlrev_b32", 1, I(2), 1)
        p.raw("    buffer_store_dword v0, v1, s[64:67], 0 offen")
    p.s("s_endpgm")


RING = 60
RB = 12
SPLIT = float(os.environ.get("SPLIT", "0.64"))
HEAD = int(os.environ.get("HEAD", "30"))
REGP = [20, 22, 23, 25, 27, 28, 30]


class Loader:
    def __init__(self, p, nunits, load_fn, lds_addr_fn):
        self.p = p
        self.n = nunits
        self.load_fn = load_fn
        self.lds_addr_fn = lds_addr_fn
        self.issued = 0
        self.written = 0

    def reg(self, u):
        return RB + 4 * (u % RING)

    def issue_upto(self, lim):
        lim = min(lim, self.n, self.written + RING)
        while self.issued < lim:
            self.load_fn(self.issued, self.reg(self.issued))
            self.issued += 1

    def write_units(self, cnt):
        p = self.p
        end = self.written + cnt
        p.vmcnt(min(63, self.issued - end))
        while self.written < end:
            u = self.written
            addr = self.lds_addr_fn(u)
            p.ds_write128(9 + addr // 65536, self.reg(u), addr % 65536)
            self.written += 1
        p.lgkm(0)


def gen_kvloader(p):
    p.label("L_kvload")
    L = 9
    p.v("v_and_b32", L, I(63), 0)
    p.v("v_lshrrev_b32", 11, I(4), L)
    p.v("v_and_b32", 12, I(15), L)
    p.v("v_lshlrev_b32", 13, I(8), 11)
    for j in range(4):
        p.v("v_add_u32", 14, I(4 * j), 11)
        p.v("v_xor_b32", 14, 14, 12)
        p.v("v_lshlrev_b32", 14, I(4), 14)
        p.v("v_add_u32", 1 + j, 14, 13)
    p.v("v_lshlrev_b32", 14, I(2), 11)
    p.v("v_xor_b32", 14, 14, 12)
    p.v("v_lshlrev_b32", 14, I(4), 14)
    p.v("v_add_u32", 5, 14, 13)
    p.s(f"s_add_u32 s{sROT}, s{sB}, s{sHKV}")
    p.s(f"s_and_b32 s{sT0}, s{sWAVE}, 3")
    p.s(f"s_lshl_b32 s{sPAR}, s{sT0}, 12")
    p.v("v_lshlrev_b32", 9, I(4), L)
    p.v("v_add_u32", 9, f"s{sPAR}", 9)
    p.v("v_add_u32", 10, I(65536), 9)
    p.v("v_add_u32", 11, I(131072), 9)
    add64(p, sK, f"s{sPAR}")
    p.s(f"s_sub_u32 s{sK+2}, s{sK+2}, s{sPAR}")
    add64(p, sV, f"s{sPAR}")
    p.s(f"s_sub_u32 s{sV+2}, s{sV+2}, s{sPAR}")

    p.v("v_and_b32", 14, I(63), 0)
    for j in range(4):
        p.v("v_xor_b32", WOV + j, I(j << 2), 14)
        p.v("v_lshlrev_b32", WOV + j, I(4), WOV + j)
    p.s(f"s_lshl_b32 s{sT1}, s{sHKV}, 19")
    p.s(f"s_add_u32 s{sT1}, s{sT1}, s{sPAR}")
    add64(p, sWO, f"s{sT1}")
    p.s(f"s_sub_u32 s{sWO+2}, s{sWO+2}, s{sT1}")
    regtiles = []
    for u in REGP:
        regtiles += [2 * u, 2 * u + 1]

    def load_fn(unit, dst):
        if unit >= 64:
            n, j = regtiles[(unit - 64) // 4], unit % 4
            if j == 0:
                p.s(f"s_mov_b32 s{sOFF}, {(n-32)*16384}")
            p.vload4(dst, WOV + j, sWO, f"s{sOFF}", j * 1024)
            return
        i, j = unit // 4, unit % 4
        kind, t = KVSEQ[i]
        if j == 0:
            p.s(f"s_add_u32 s{sOFF}, s{sROT}, {t}")
            p.s(f"s_and_b32 s{sOFF}, s{sOFF}, 7")
            p.s(f"s_lshl_b32 s{sOFF}, s{sOFF}, 14")
        if kind == "K":
            p.vload4(dst, 1 + j, sK, f"s{sOFF}", j * 1024, KVMOD)
        else:
            p.vload4(dst, 5, sV, f"s{sOFF}", j * 1024, KVMOD)

    def lds_fn(unit):
        if unit >= 64:
            n, j = regtiles[(unit - 64) // 4], unit % 4
            return (n % NW) * SLOT + j * 1024
        i, j = unit // 4, unit % 4
        return (KV0 + i % NKV) * SLOT + j * 1024

    ld = Loader(p, 64 + 4 * len(regtiles), load_fn, lds_fn)
    ld.issue_upto(4 * KV_PRE)
    p.barrier()
    for s in range(NSTEP):
        p.barrier()
        ld.issue_upto(int(4 * (KV_PRE + min(s + 1, 16) * KV_FRAC + max(0, s - 15) * KV_FRAC2)) // 4 * 4)
        if s in (11, 14):
            ld.write_units(4)
        i = s - 16 + 1
        if 2 <= i < 16:
            ld.write_units(4)
        for u in REGP:
            if cstep(u - 4) == s - 1:
                ld.write_units(8)
        if s == 31:
            p.barrier()
    assert ld.written == ld.n
    p.s("s_endpgm")


WOV = 252

KV_PRE = int(os.environ.get("KV_PRE", "1"))
KV_RATE = int(os.environ.get("KV_RATE", "1"))
KV_START = int(os.environ.get("KV_START", "0"))
KVMOD = os.environ.get("KVMOD", " nt")
KV_FRAC = float(os.environ.get("KV_FRAC", "0.4"))
KV_FRAC2 = float(os.environ.get("KV_FRAC2", "2"))


def gen_main():
    p = Prog()
    p.raw(".text")
    p.raw(f".globl {NAME}_kernel")
    p.raw(".p2align 8")
    p.raw(f".type {NAME}_kernel,@function")
    p.label(f"{NAME}_kernel")
    p.s("s_cmp_ge_u32 s2, 256")
    p.s("s_cbranch_scc1 L_exit")
    p.s("s_load_dwordx16 s[4:19], s[0:1], 0")
    p.s(f"s_and_b32 s{sHKV}, s2, 7")
    p.s(f"s_lshr_b32 s{sB}, s2, 3")
    p.v("v_lshrrev_b32", 1, I(6), 0)
    p.rfl(f"s{sWAVE}", 1)
    p.s("s_waitcnt lgkmcnt(0)")
    srd(p, sX, 4, 5, 32768)
    srd(p, sK, 6, 7, 131072)
    srd(p, sV, 8, 9, 131072)
    srd(p, sWQ, 10, 11, 4194304)
    srd(p, sWO, 12, 13, 4194304)
    srd(p, sWS, 18, 19, 65536)
    p.s(f"s_lshl_b32 s{sT0}, s{sB}, 15")
    add64(p, sX, f"s{sT0}")
    p.s(f"s_lshl_b32 s{sT0}, s2, 17")
    add64(p, sK, f"s{sT0}")
    add64(p, sV, f"s{sT0}")
    p.s(f"s_lshl_b32 s{sT0}, s{sHKV}, 5")
    p.s(f"s_add_u32 s{sT0}, s{sT0}, s{sB}")
    p.s(f"s_lshl_b32 s{sT0}, s{sT0}, 16")
    add64(p, sWS, f"s{sT0}")
    p.s(f"s_cmp_ge_u32 s{sWAVE}, 4")
    p.s("s_cbranch_scc1 L_kvload")
    gen_compute(p)
    gen_kvloader(p)
    p.label("L_exit")
    p.s("s_endpgm")
    return p


def gen_reduce():
    p = Prog()
    p.raw(".globl gqa_reduce_kernel")
    p.raw(".p2align 8")
    p.raw(".type gqa_reduce_kernel,@function")
    p.label("gqa_reduce_kernel")
    p.s("s_cmp_ge_u32 s2, 256")
    p.s("s_cbranch_scc1 L_rexit")
    p.s("s_load_dwordx2 s[4:5], s[0:1], 40")
    p.s("s_load_dwordx2 s[6:7], s[0:1], 56")
    p.v("v_lshrrev_b32", 1, I(6), 0)
    p.v("v_and_b32", 2, I(63), 0)
    p.s("s_lshl_b32 s3, s2, 2")
    p.v("v_add_u32", 1, "s3", 1)
    p.v("v_lshlrev_b32", 3, I(11), 1)
    p.v("v_lshlrev_b32", 4, I(4), 2)
    p.v("v_add_u32", 3, 3, 4)
    p.v("v_lshrrev_b32", 5, I(5), 1)
    p.v("v_lshlrev_b32", 5, I(5), 5)
    p.v("v_and_b32", 6, I(31), 2)
    p.v("v_add_u32", 5, 5, 6)
    p.v("v_lshlrev_b32", 5, I(10), 5)
    p.v("v_and_b32", 6, I(31), 1)
    p.v("v_lshlrev_b32", 6, I(5), 6)
    p.v("v_add_u32", 5, 5, 6)
    p.v("v_lshrrev_b32", 6, I(5), 2)
    p.v("v_lshlrev_b32", 6, I(4), 6)
    p.v("v_add_u32", 5, 5, 6)
    p.s("s_waitcnt lgkmcnt(0)")
    srd(p, 8, 4, 5, 1048576)
    srd(p, 12, 6, 7, 16777216)
    for hk in range(8):
        p.s(f"s_mov_b32 s{16+hk}, {hk*2097152}")
    for hk in range(8):
        p.vload4(8 + 8 * hk, 3, 12, f"s{16+hk}", 0)
        p.vload4(12 + 8 * hk, 3, 12, f"s{16+hk}", 1024)
    for hk in range(1, 8):
        p.vmcnt(14 - 2 * hk)
        for e in range(8):
            p.v("v_add_f32", 8 + e, 8 + e, 8 + 8 * hk + e)
    for e in range(4):
        p.v("v_cvt_pk_bf16_f32", 80 + e, 8 + 2 * e, 9 + 2 * e)
    p.vstore4(80, 5, 8, "0", 0)
    p.label("L_rexit")
    p.s("s_endpgm")
    return p


def kd(name, vgpr):
    return f""".amdhsa_kernel {name}
  .amdhsa_next_free_vgpr {vgpr}
  .amdhsa_next_free_sgpr 102
  .amdhsa_accum_offset {vgpr}
  .amdhsa_group_segment_fixed_size 0
  .amdhsa_kernarg_size 64
  .amdhsa_user_sgpr_count 2
  .amdhsa_user_sgpr_kernarg_segment_ptr 1
  .amdhsa_system_sgpr_workgroup_id_x 1
.end_amdhsa_kernel
"""


def main():
    m = gen_main()
    r = gen_reduce()
    txt = HEADER
    txt += f"; @launch kernel={NAME}_kernel grid=(256,1,1) block=(512,1,1) lds={LDS_BYTES}\n"
    txt += "; @launch kernel=gqa_reduce_kernel grid=(256,1,1) block=(256,1,1) lds=0\n"
    txt += '.amdgcn_target "amdgcn-amd-amdhsa--gfx950"\n'
    txt += "\n".join(m.lines) + "\n"
    txt += "\n".join(r.lines) + "\n"
    txt += '.section .rodata,"a"\n.p2align 6\n'
    txt += kd(f"{NAME}_kernel", 256)
    txt += ".p2align 6\n"
    txt += kd("gqa_reduce_kernel", 88)
    open(OUT, "w").write(txt)
    print("wrote", OUT, len(txt), "bytes", len(m.lines), "lines")


main()
```

```python
import sys, math

NAME = "standalone__gqa_block_cached__near_ridge"
import os
DBG = int(os.environ.get("DBG", "0"))
OUT = sys.argv[1] if len(sys.argv) > 1 else f"cdna_kernels/{NAME}.s"

HEADER = """; Kernarg layout for this problem (64 bytes, ptrs only, base s[0:1]):
"""


def R(a, n=1):
    return set(range(a, a + n))


def I(x):
    return str(x)


def vr(a, n):
    return f"v{a}" if n == 1 else f"v[{a}:{a+n-1}]"


class Ins:
    __slots__ = ("kind", "wr", "rd", "a", "b", "c", "d", "ws")

    def __init__(self, kind, wr=None, rd=None, a=None, b=None, c=None, d=None):
        self.kind = kind
        self.wr = wr or set()
        self.rd = rd or set()
        self.a, self.b, self.c, self.d = a, b, c, d
        self.ws = 1


VALUISH = ("valu", "trans", "perm", "rfl")


def need(p, c):
    n = 0
    if p.kind == "mfma":
        pd = p.wr
        if c.kind == "mfma":
            if (c.a | c.b) & pd:
                n = max(n, 12)
            if c.c & pd:
                n = max(n, 0 if c.c == pd else 10)
            elif c.wr & pd:
                n = max(n, 10)
        elif c.kind in VALUISH:
            if (c.rd | c.wr) & pd:
                n = max(n, 12)
            if c.wr & p.c:
                n = max(n, 7)
        elif c.kind in ("dsr", "dsw", "vml", "vms"):
            if (c.rd | c.wr) & pd:
                n = max(n, 12)
    elif p.kind in VALUISH:
        if c.kind == "mfma" and (c.a | c.b | c.c) & p.wr:
            n = max(n, 2)
        if p.kind == "trans" and c.kind != "mfma" and (c.rd & p.wr):
            n = max(n, 1)
        if c.kind == "perm" and (c.rd & p.wr):
            n = max(n, 2)
        if c.kind == "rfl" and (c.rd & p.wr):
            n = max(n, 1)
    elif p.kind in ("vms", "dsw"):
        if c.kind in VALUISH and (c.wr & p.rd):
            n = max(n, 2)
    elif p.kind == "m0w":
        if c.kind == "dma":
            n = max(n, 1)
    elif p.kind == "rfl_s":
        pass
    return n


class Prog:
    def __init__(self):
        self.lines = []
        self.hist = []
        self.lds_out = 0
        self.ts = None

    def raw(self, text):
        self.lines.append(text)

    def label(self, l):
        self.lines.append(f"{l}:")
        self.hist = []

    def _emit(self, text, ins):
        dist = 0
        req = 0
        for p in reversed(self.hist):
            r = need(p, ins) - dist
            req = max(req, r)
            dist += p.ws
            if dist > 16:
                break
        while req > 0:
            k = min(req, 8)
            self.lines.append(f"    s_nop {k-1}")
            nop = Ins("nop")
            nop.ws = k
            self.hist.append(nop)
            req -= k
        self.lines.append("    " + text)
        self.hist.append(ins)
        if len(self.hist) > 40:
            self.hist = self.hist[-40:]

    def s(self, text):
        self._emit(text, Ins("salu"))

    def m0(self, text):
        self._emit(text, Ins("m0w"))

    def nop(self, k):
        self.lines.append(f"    s_nop {k-1}")
        nop = Ins("nop")
        nop.ws = k
        self.hist.append(nop)

    def v(self, op, dst, *srcs, kind="valu", ndst=1):
        rd = set()
        ts = []
        for s_ in srcs:
            if isinstance(s_, int):
                rd.add(s_)
                ts.append(f"v{s_}")
            elif isinstance(s_, tuple):
                rd.add(s_[1])
                ts.append(f"-v{s_[1]}")
            else:
                ts.append(s_)
        self._emit(f"{op} {vr(dst, ndst)}, " + ", ".join(ts), Ins(kind, R(dst, ndst), rd))

    def trans(self, op, dst, src):
        self.v(op, dst, src, kind="trans")

    def perm_swap(self, a, b):
        self._emit(f"v_permlane32_swap_b32 v{a}, v{b}", Ins("perm", {a, b}, {a, b}))

    def rfl(self, sdst, src):
        self._emit(f"v_readfirstlane_b32 {sdst}, v{src}", Ins("rfl", set(), {src}))

    def mfma(self, d, a, b, c):
        cs = "0" if c is None else vr(c, 16)
        self._emit(
            f"v_mfma_f32_32x32x16_bf16 {vr(d,16)}, {vr(a,4)}, {vr(b,4)}, {cs}",
            Ins("mfma", R(d, 16), set(), R(a, 4), R(b, 4), set() if c is None else R(c, 16)),
        )

    def ds_read(self, op, dst, n, addr, off):
        assert 0 <= off < 65536, off
        self._emit(f"{op} {vr(dst,n)}, v{addr} offset:{off}", Ins("dsr", R(dst, n), {addr}))
        self.lds_out += 1
        return self.lds_out

    def ds_write128(self, addr, data, off):
        assert 0 <= off < 65536
        self._emit(f"ds_write_b128 v{addr}, {vr(data,4)} offset:{off}", Ins("dsw", set(), {addr} | R(data, 4)))
        self.lds_out += 1

    def lgkm(self, n):
        self._emit(f"s_waitcnt lgkmcnt({min(n,15)})", Ins("wait"))

    def vmcnt(self, n):
        assert n <= 63
        self._emit(f"s_waitcnt vmcnt({n})", Ins("wait"))

    def barrier(self):
        self._emit("s_barrier", Ins("wait"))
        if DBG and self.ts is not None:
            self.stamp()

    def stamp(self):
        self._emit("s_memtime s[60:61]", Ins("salu"))
        self._emit("s_waitcnt lgkmcnt(0)", Ins("wait"))
        self._emit(f"v_writelane_b32 v0, s60, {self.ts}", Ins("valu", {0}, set()))
        self.ts += 1

    def vload4(self, dst, voff, srd, soff, off, mod=""):
        assert 0 <= off < 4096
        self._emit(
            f"buffer_load_dwordx4 {vr(dst,4)}, v{voff}, s[{srd}:{srd+3}], {soff} offen offset:{off}{mod}",
            Ins("vml", R(dst, 4), {voff}),
        )

    def vstore4(self, data, voff, srd, soff, off):
        assert 0 <= off < 4096
        self._emit(
            f"buffer_store_dwordx4 {vr(data,4)}, v{voff}, s[{srd}:{srd+3}], {soff} offen offset:{off}",
            Ins("vms", set(), {voff} | R(data, 4)),
        )

    def dma(self, voff, srd, soff, off):
        assert 0 <= off < 4096
        self._emit(
            f"buffer_load_dwordx4 v{voff}, s[{srd}:{srd+3}], {soff} offen offset:{off} lds",
            Ins("dma", set(), {voff}),
        )


SLOT = 16384
NW = 8
KV0 = 8
NKV = 2
EXCH = KV0 * SLOT
LDS_BYTES = 10 * SLOT
KVSEQ = [("K", 0), ("K", 1)]
for t in range(2, 8):
    KVSEQ += [("V", t - 2), ("K", t)]
KVSEQ += [("V", 6), ("V", 7)]
assert len(KVSEQ) == 16
NSTEP = 48

sB, sHKV, sWAVE = 20, 21, 22
sX, sK, sV, sWQ, sWO, sWS = 24, 28, 32, 36, 40, 44
sOFF, sPAR, sC, sT0, sT1, sT2 = 48, 49, 50, 51, 52, 53
sMT = 54
sROT = 58

vW = 1
vK = 1
vV = 9
vVO = 13
vXO, vER, vSO = 17, 18, 19
vM, vL, vAL, vMC, vT0, vT1, vT2, vT3 = 20, 21, 22, 23, 24, 25, 26, 27
vU0, vU1, vU2, vU3 = 28, 29, 30, 31
ACC = 32
FR = 96
XF = 128
QB = 128
SB = 160
PB = 224
OB = 160
BF = 128

C_SCALE = (128.0 ** -0.5) * math.log2(math.e)


def f32hex(x):
    import struct

    return "0x%08x" % struct.unpack("<I", struct.pack("<f", x))[0]


def srd(p, dst, lo, hi, nrec):
    p.s(f"s_mov_b32 s{dst}, s{lo}")
    p.s(f"s_and_b32 s{dst+1}, s{hi}, 0xffff")
    p.s(f"s_mov_b32 s{dst+2}, {nrec}")
    p.s(f"s_mov_b32 s{dst+3}, 0x00020000")


def add64(p, reg, sval):
    p.s(f"s_add_u32 s{reg}, s{reg}, {sval}")
    p.s(f"s_addc_u32 s{reg+1}, s{reg+1}, 0")


def mfma_stream(p, items, valu, nbuf_ahead, grp=2, head=0):
    nitem = len(items)
    marks = [None] * nitem
    issued = 0
    if os.environ.get("NOVALU"):
        valu = []

    def issue(i):
        last = None
        for (op, dst, n, addr, off) in items[i]["reads"]:
            last = p.ds_read(op, dst, n, addr, off)
        marks[i] = last

    while issued < min(nbuf_ahead, nitem):
        issue(issued)
        issued += 1
    tot = sum(c for c, _ in valu)
    vi = 0
    done = 0
    while vi < len(valu) and done < head:
        done += valu[vi][0]
        valu[vi][1]()
        vi += 1
    base = done
    for i in range(nitem):
        if i % grp == 0:
            j = min(i + grp, nitem) - 1
            assert marks[j] is not None
            p.lgkm(p.lds_out - marks[j])
        for extra in items[i].get("pre", []):
            extra()
        if not (os.environ.get("NOMFMA") and valu):
            p.mfma(*items[i]["mf"])
        if i % grp == grp - 1:
            while issued < nitem and issued <= i + nbuf_ahead:
                issue(issued)
                issued += 1
        while vi < len(valu) and done < base + (tot - base) * (i + 1) / nitem:
            done += valu[vi][0]
            valu[vi][1]()
            vi += 1
    while vi < len(valu):
        valu[vi][1]()
        vi += 1


def softmax_p(p, t):
    S = SB + 32 * (t & 1)
    P = PB + 16 * (t & 1)
    L = []

    def A(f, c=1):
        L.append((c, f))

    A(lambda: p.v("v_max3_f32", vT0, S, S + 1, S + 2))
    A(lambda: p.v("v_max3_f32", vT1, S + 3, S + 4, S + 5))
    for i in range(6, 30, 4):
        A(lambda i=i: p.v("v_max3_f32", vT0, vT0, S + i, S + i + 1))
        A(lambda i=i: p.v("v_max3_f32", vT1, vT1, S + i + 2, S + i + 3))
    A(lambda: p.v("v_max3_f32", vT0, vT0, S + 30, S + 31))
    A(lambda: p.v("v_max_f32", vT0, vT0, vT1))
    A(lambda: p.v("v_mov_b32", vT1, vT0))
    A(lambda: p.perm_swap(vT0, vT1))
    if t == 0:
        A(lambda: p.v("v_max_f32", vM, vT0, vT1))
    else:
        A(lambda: p.v("v_max3_f32", vT0, vT0, vT1, vM))
        A(lambda: p.v("v_sub_f32", vT1, vM, vT0))
        A(lambda: p.v("v_mul_f32", vT1, f"s{sC}", vT1))
        A(lambda: p.trans("v_exp_f32", vAL, vT1), 2)
        A(lambda: p.v("v_mov_b32", vM, vT0))
    A(lambda: p.v("v_mul_f32", vMC, f"s{sC}", vM))
    first = True
    for g in range(4):
        b0 = S + 8 * g
        for i in range(8):
            A(lambda i=i, b0=b0: p.v("v_fma_f32", b0 + i, b0 + i, f"s{sC}", ("neg", vMC)))
        for i in range(8):
            A(lambda i=i, b0=b0: p.trans("v_exp_f32", b0 + i, b0 + i), 2)
        for i in range(0, 8, 2):
            if first:
                if t == 0:
                    A(lambda b0=b0: p.v("v_mov_b32", vL, b0))
                else:
                    A(lambda b0=b0: p.v("v_fma_f32", vL, vL, vAL, b0))
                A(lambda b0=b0: p.v("v_mov_b32", vT2, b0 + 1))
                first = False
            else:
                A(lambda i=i, b0=b0: p.v("v_add_f32", vL, vL, b0 + i))
                A(lambda i=i, b0=b0: p.v("v_add_f32", vT2, vT2, b0 + i + 1))
        for i in range(4):
            A(lambda i=i, g=g, b0=b0: p.v("v_cvt_pk_bf16_f32", P + 4 * g + i, b0 + 2 * i, b0 + 2 * i + 1))
    A(lambda: p.v("v_add_f32", vL, vL, vT2))
    return L


def rescale(p):
    return [(1, lambda i=i: p.v("v_mul_f32", ACC + i, vAL, ACC + i)) for i in range(64)]


def split_cost(L, frac):
    tot = sum(c for c, _ in L)
    acc = 0
    for k, (c, _) in enumerate(L):
        if acc >= tot * frac:
            return L[:k], L[k:]
        acc += c
    return L, []


def w_items(slot_pair, bfrags, first):
    items = []
    for j in range(2):
        slot = slot_pair[j]
        for mt in range(4):
            a = FR + 16 * j + 4 * mt
            addr = vW + (slot // 4) * 4 + mt
            base = (slot % 4) * SLOT
            reads = [
                ("ds_read_b64_tr_b16", a, 2, addr, base),
                ("ds_read_b64_tr_b16", a + 2, 2, addr, base + 4096),
            ]
            c = None if (first and j == 0) else ACC + 16 * mt
            items.append(dict(reads=reads, mf=(ACC + 16 * mt, a, bfrags[j], c)))
    return items


def lane_parts(p):
    lane, r_, h_, aq = vU0, vU1, vU2, vU3
    p.v("v_mbcnt_lo_u32_b32", lane, "-1", "0")
    p.v("v_mbcnt_hi_u32_b32", lane, "-1", lane)
    p.v("v_lshrrev_b32", h_, I(5), lane)
    p.v("v_bfe_u32", r_, lane, I(2), I(2))
    p.v("v_bfe_u32", aq, lane, I(4), I(1))
    p.v("v_lshlrev_b32", aq, I(2), aq)
    p.v("v_and_b32", vT0, I(1), lane)
    p.v("v_lshlrev_b32", vT0, I(1), vT0)
    p.v("v_or_b32", aq, aq, vT0)
    p.v("v_bfe_u32", vT0, lane, I(1), I(1))
    p.v("v_or_b32", aq, aq, vT0)
    p.v("v_lshlrev_b32", aq, I(3), aq)


def setup_w_addr(p):
    lane_parts(p)
    lane, r_, h_, aq = vU0, vU1, vU2, vU3
    p.v("v_lshlrev_b32", vT0, I(3), h_)
    p.v("v_add_u32", vT0, vT0, r_)
    p.v("v_lshlrev_b32", vT0, I(10), vT0)
    p.v("v_add_u32", vT0, vT0, aq)
    p.s(f"s_lshl_b32 s{sT0}, s{sWAVE}, 8")
    p.v("v_add_u32", vT0, f"s{sT0}", vT0)
    for mt in range(4):
        p.v("v_xor_b32", vT1, I(mt), r_)
        p.v("v_lshlrev_b32", vT1, I(6), vT1)
        p.v("v_add_u32", vW + mt, vT0, vT1)
        p.v("v_add_u32", vW + 4 + mt, I(0x10000), vW + mt)


def setup_kv_addr(p):
    lane_parts(p)
    lane, r_, h_, aq = vU0, vU1, vU2, vU3
    p.v("v_lshlrev_b32", vT0, I(2), h_)
    p.v("v_add_u32", vT0, vT0, r_)
    p.v("v_lshlrev_b32", vT0, I(8), vT0)
    p.v("v_add_u32", vT0, vT0, aq)
    p.v("v_add_u32", vT0, I(KV0 * SLOT), vT0)
    for dt in range(4):
        p.v("v_xor_b32", vT1, I(dt), r_)
        p.v("v_lshlrev_b32", vT1, I(6), vT1)
        p.v("v_add_u32", vV + dt, vT0, vT1)
    p.v("v_and_b32", vT0, I(15), lane)
    p.v("v_xor_b32", vT0, vT0, h_)
    p.v("v_lshlrev_b32", vT0, I(4), vT0)
    p.v("v_and_b32", vT1, I(31), lane)
    p.v("v_lshlrev_b32", vT1, I(8), vT1)
    p.v("v_add_u32", vT1, I(KV0 * SLOT), vT1)
    for ks in range(8):
        p.v("v_xor_b32", vK + ks, I(ks << 5), vT0)
        p.v("v_add_u32", vK + ks, vK + ks, vT1)


def cstep(u):
    return u if u < 16 else 32 + (u - 16)


def gen_compute(p):
    p.label("L_compute")
    lane = vU0
    p.v("v_and_b32", lane, I(63), 0)
    p.s(f"s_lshl_b32 s{sT0}, s{sWAVE}, 13")
    p.s(f"s_and_b32 s{sT1}, s{sWAVE}, 1")
    p.s(f"s_lshl_b32 s{sT1}, s{sT1}, 3")
    for i in range(8):
        p.s(f"s_add_u32 s{sT2}, s{sT1}, {i}")
        p.v("v_xor_b32", vT0 + (i & 3), f"s{sT2}", lane)
        p.v("v_lshlrev_b32", vT0 + (i & 3), I(4), vT0 + (i & 3))
        if i % 4 == 0:
            p.s(f"s_add_u32 s{sOFF}, s{sT0}, {i*1024}")
            p.m0(f"s_add_u32 m0, s{sT0}, {EXCH + i*1024}")
        p.dma(vT0 + (i & 3), sX, f"s{sOFF}", (i & 3) * 1024)
    for j in range(4):
        p.v("v_xor_b32", vVO + j, I(j << 2), lane)
        p.v("v_lshlrev_b32", vVO + j, I(4), vVO + j)
        p.v("v_add_u32", vVO + j, I(j * 7168), vVO + j)
    p.s(f"s_lshl_b32 s{sPAR}, s{sWAVE}, 12")
    p.s(f"s_lshl_b32 s{sT1}, s{sHKV}, 10")
    p.s(f"s_lshl_b32 s{sT2}, s{sWAVE}, 15")
    p.s(f"s_add_u32 s{sT1}, s{sT1}, s{sT2}")
    add64(p, sWQ, f"s{sT1}")
    p.s(f"s_sub_u32 s{sWQ+2}, s{sWQ+2}, s{sT1}")
    p.s(f"s_lshl_b32 s{sT1}, s{sHKV}, 19")
    p.s(f"s_add_u32 s{sT1}, s{sT1}, s{sPAR}")
    add64(p, sWO, f"s{sT1}")
    p.s(f"s_sub_u32 s{sWO+2}, s{sWO+2}, s{sT1}")
    vm = [8]
    pair_end = {}

    def issue_pair(u):
        for n in (2 * u, 2 * u + 1):
            slot = n % NW
            p.m0(f"s_add_u32 m0, s{sPAR}, {slot*SLOT}")
            if n < 32:
                p.s(f"s_mov_b32 s{sOFF}, {n*131072}")
                for j in range(4):
                    p.dma(vVO + j, sWQ, f"s{sOFF}", j * 1024)
            else:
                p.s(f"s_mov_b32 s{sOFF}, {(n-32)*16384}")
                for j in range(4):
                    p.dma(vVO + j, sWO, f"s{sOFF}", j * 1024)
            vm[0] += 4
        pair_end[u] = vm[0]
        if u == 15:
            for j in range(1, 4):
                p.v("v_subrev_u32", vVO + j, I(j * 7168), vVO + j)

    def wait_pair(step):
        us = [u for u in range(32) if cstep(u) == step]
        if us and us[0] not in REGP:
            p.vmcnt(vm[0] - pair_end[us[0]])

    def refill(s):
        for u in range(4, 32):
            if cstep(u - 4) == s - 1 and u not in REGP:
                issue_pair(u)

    for u in range(4):
        issue_pair(u)
    setup_w_addr(p)
    lane, h_ = vU0, vU2
    p.v("v_and_b32", vT0, I(15), lane)
    p.v("v_xor_b32", vT0, vT0, h_)
    p.v("v_lshlrev_b32", vT0, I(4), vT0)
    p.v("v_and_b32", vT1, I(31), lane)
    p.v("v_lshlrev_b32", vT1, I(10), vT1)
    p.v("v_add_u32", vT1, I(EXCH), vT1)
    for ks in range(8):
        p.v("v_xor_b32", FR + ks, I(ks << 5), vT0)
        p.v("v_add_u32", FR + ks, FR + ks, vT1)
    p.v("v_lshlrev_b32", vSO, I(4), lane)
    p.v("v_add_u32", vER, I(EXCH), vSO)
    p.s(f"s_lshl_b32 s{sT0}, s{sWAVE}, 14")
    p.v("v_add_u32", vSO, f"s{sT0}", vSO)
    p.s(f"s_lshl_b32 s{sT0}, s{sWAVE}, 13")
    p.v("v_add_u32", vXO, f"s{sT0}", vER)
    p.s(f"s_mov_b32 s{sC}, {f32hex(C_SCALE)}")
    for mt in range(4):
        p.s(f"s_mov_b32 s{sMT+mt}, {mt*4096}")
    if DBG:
        p.s("s_memrealtime s[62:63]")
        p.ts = 0
        p.stamp()
    p.vmcnt(vm[0] - 8)
    p.barrier()
    for ks in range(32):
        p.ds_read("ds_read_b128", XF + 4 * ks, 4, FR + (ks & 7), (ks >> 3) * 256)
    wait_pair(0)
    p.lgkm(0)

    for a in range(16):
        p.barrier()
        refill(a)
        slots = ((2 * a) % NW, (2 * a + 1) % NW)
        items = w_items(slots, (XF + 8 * a, XF + 8 * a + 4), a == 0)
        mfma_stream(p, items, [], 7, grp=1)
        wait_pair(a + 1)
        p.lgkm(0)
    setup_kv_addr(p)
    for i in range(32):
        p.v("v_cvt_pk_bf16_f32", QB + i, ACC + 2 * i, ACC + 2 * i + 1)

    carry = []
    for si, (kind, t) in enumerate(KVSEQ):
        p.barrier()
        refill(16 + si)
        base = (si % NKV) * SLOT
        items = []
        fi = 0
        if kind == "K":
            S = SB + 32 * (t & 1)
            for ks in range(8):
                for kt in range(2):
                    f = FR + 4 * (fi % 8)
                    fi += 1
                    reads = [("ds_read_b128", f, 4, vK + ks, base + kt * 8192)]
                    c = None if ks == 0 else S + 16 * kt
                    items.append(dict(reads=reads, mf=(S + 16 * kt, f, QB + 4 * ks, c)))
            if t == 1:
                valu = softmax_p(p, 0)
            elif t >= 2:
                valu = rescale(p) + carry
            else:
                valu = []
            carry = []
            mfma_stream(p, items, valu, 8, grp=2, head=HEAD)
        else:
            P = PB + 16 * (t & 1)
            for ks in range(4):
                for dt in range(4):
                    f = FR + 4 * (fi % 8)
                    fi += 1
                    reads = [
                        ("ds_read_b64_tr_b16", f, 2, vV + dt, base + ks * 4096),
                        ("ds_read_b64_tr_b16", f + 2, 2, vV + dt, base + ks * 4096 + 2048),
                    ]
                    c = None if (t == 0 and ks == 0) else ACC + 16 * dt
                    items.append(dict(reads=reads, mf=(ACC + 16 * dt, f, P + 4 * ks, c)))
            if t == 7:
                items[0]["pre"] = [f for _, f in rescale(p)]
                valu = []
            elif t == 6:
                valu = softmax_p(p, 7)
            else:
                valu, carry = split_cost(softmax_p(p, t + 1), SPLIT)
            mfma_stream(p, items, valu, 6, grp=2, head=HEAD)
        p.lgkm(0)
    p.v("v_mov_b32", vT0, vL)
    p.v("v_mov_b32", vT1, vL)
    p.perm_swap(vT0, vT1)
    p.v("v_add_f32", vT0, vT0, vT1)
    p.trans("v_rcp_f32", vT0, vT0)
    for i in range(32):
        p.v("v_mul_f32", ACC + 2 * i, vT0, ACC + 2 * i)
        p.v("v_mul_f32", ACC + 2 * i + 1, vT0, ACC + 2 * i + 1)
        p.v("v_cvt_pk_bf16_f32", OB + i, ACC + 2 * i, ACC + 2 * i + 1)
    p.barrier()
    for kk in range(8):
        p.ds_write128(vXO, OB + 4 * kk, kk * 1024)
    setup_w_addr(p)
    wait_pair(32)
    p.lgkm(0)
    for d in range(16):
        p.barrier()
        refill(32 + d)
        n0 = 32 + 2 * d
        slots = (n0 % NW, (n0 + 1) % NW)
        bf = BF + 8 * (d & 1)
        p.ds_read("ds_read_b128", bf, 4, vER, (2 * d) * 1024)
        p.ds_read("ds_read_b128", bf + 4, 4, vER, (2 * d + 1) * 1024)
        items = w_items(slots, (bf, bf + 4), d == 0)
        mfma_stream(p, items, [], 6, grp=1)
        if d < 15:
            wait_pair(33 + d)
            p.lgkm(0)
    for mt in range(4):
        for j in range(4):
            p.vstore4(ACC + 16 * mt + 4 * j, vSO, sWS, f"s{sMT+mt}", j * 1024)
    if DBG:
        p.stamp()
        p.vmcnt(0)
        p.stamp()
        p.ts = None
        p.s("s_memrealtime s[60:61]")
        p.s("s_waitcnt lgkmcnt(0)")
        p.s("s_sub_u32 s60, s60, s62")
        p.raw("    v_writelane_b32 v0, s60, 63")
        p.s(f"s_cmp_lg_u32 s{sWAVE}, 0")
        p.s("s_cbranch_scc1 L_exit")
        p.s("s_memrealtime s[60:61]")
        p.s("s_waitcnt lgkmcnt(0)")
        p.s("s_mov_b32 s68, s18")
        p.s("s_and_b32 s69, s19, 0xffff")
        p.s("s_mov_b32 s70, 0x4000000")
        p.s("s_mov_b32 s71, 0x00020000")
        p.raw("    v_mov_b32 v2, s66")
        p.raw("    v_mov_b32 v3, s62")
        p.raw("    v_mov_b32 v4, s60")
        p.raw("    v_mov_b32 v5, 0")
        p.s("s_lshl_b32 s72, s2, 4")
        p.s("s_add_u32 s72, s72, 0x2000000")
        p.raw("    v_mov_b32 v6, 0")
        p.raw("    buffer_store_dwordx4 v[2:5], v6, s[68:71], s72 offen")
        p.s(f"s_cmp_lg_u32 s2, {DBG-1}")
        p.s("s_cbranch_scc1 L_exit")
        p.s(f"s_cmp_lg_u32 s{sWAVE}, 0")
        p.s("s_cbranch_scc1 L_exit")
        srd(p, 64, 16, 17, 256)
        p.v("v_mbcnt_lo_u32_b32", 1, "-1", "0")
        p.v("v_mbcnt_hi_u32_b32", 1, "-1", 1)
        p.v("v_lshlrev_b32", 1, I(2), 1)
        p.raw("    buffer_store_dword v0, v1, s[64:67], 0 offen")
    p.s("s_endpgm")


RING = 60
RB = 12
SPLIT = float(os.environ.get("SPLIT", "0.64"))
HEAD = int(os.environ.get("HEAD", "30"))
REGP = [20, 22, 23, 25, 27, 28, 30]


class Loader:
    def __init__(self, p, nunits, load_fn, lds_addr_fn):
        self.p = p
        self.n = nunits
        self.load_fn = load_fn
        self.lds_addr_fn = lds_addr_fn
        self.issued = 0
        self.written = 0
        self.extra = 0

    def reg(self, u):
        return RB + 4 * (u % RING)

    def issue_upto(self, lim):
        lim = min(lim, self.n, self.written + RING)
        while self.issued < lim:
            self.load_fn(self.issued, self.reg(self.issued))
            self.issued += 1

    def write_units(self, cnt):
        p = self.p
        end = self.written + cnt
        p.vmcnt(min(63, self.issued - end))
        while self.written < end:
            u = self.written
            addr = self.lds_addr_fn(u)
            p.ds_write128(9 + addr // 65536, self.reg(u), addr % 65536)
            self.written += 1
        p.lgkm(0)


def gen_kvloader(p):
    p.label("L_kvload")
    L = 9
    p.v("v_and_b32", L, I(63), 0)
    p.v("v_lshrrev_b32", 11, I(4), L)
    p.v("v_and_b32", 12, I(15), L)
    p.v("v_lshlrev_b32", 13, I(8), 11)
    for j in range(4):
        p.v("v_add_u32", 14, I(4 * j), 11)
        p.v("v_xor_b32", 14, 14, 12)
        p.v("v_lshlrev_b32", 14, I(4), 14)
        p.v("v_add_u32", 1 + j, 14, 13)
    p.v("v_lshlrev_b32", 14, I(2), 11)
    p.v("v_xor_b32", 14, 14, 12)
    p.v("v_lshlrev_b32", 14, I(4), 14)
    p.v("v_add_u32", 5, 14, 13)
    p.s(f"s_add_u32 s{sROT}, s{sB}, s{sHKV}")
    p.s(f"s_and_b32 s{sT0}, s{sWAVE}, 3")
    p.s(f"s_lshl_b32 s{sPAR}, s{sT0}, 12")
    p.v("v_lshlrev_b32", 9, I(4), L)
    p.v("v_add_u32", 9, f"s{sPAR}", 9)
    p.v("v_add_u32", 10, I(65536), 9)
    p.v("v_add_u32", 11, I(131072), 9)
    add64(p, sK, f"s{sPAR}")
    p.s(f"s_sub_u32 s{sK+2}, s{sK+2}, s{sPAR}")
    add64(p, sV, f"s{sPAR}")
    p.s(f"s_sub_u32 s{sV+2}, s{sV+2}, s{sPAR}")

    p.v("v_and_b32", 14, I(63), 0)
    for j in range(4):
        p.v("v_xor_b32", WOV + j, I(j << 2), 14)
        p.v("v_lshlrev_b32", WOV + j, I(4), WOV + j)
    p.s(f"s_lshl_b32 s{sT1}, s{sHKV}, 19")
    p.s(f"s_add_u32 s{sT1}, s{sT1}, s{sPAR}")
    add64(p, sWO, f"s{sT1}")
    p.s(f"s_sub_u32 s{sWO+2}, s{sWO+2}, s{sT1}")
    regtiles = []
    for u in REGP:
        regtiles += [2 * u, 2 * u + 1]

    def load_fn(unit, dst):
        if unit >= 64:
            n, j = regtiles[(unit - 64) // 4], unit % 4
            if j == 0:
                p.s(f"s_mov_b32 s{sOFF}, {(n-32)*16384}")
            p.vload4(dst, WOV + j, sWO, f"s{sOFF}", j * 1024)
            return
        i, j = unit // 4, unit % 4
        kind, t = KVSEQ[i]
        if j == 0:
            p.s(f"s_add_u32 s{sOFF}, s{sROT}, {t}")
            p.s(f"s_and_b32 s{sOFF}, s{sOFF}, 7")
            p.s(f"s_lshl_b32 s{sOFF}, s{sOFF}, 14")
        if kind == "K":
            p.vload4(dst, 1 + j, sK, f"s{sOFF}", j * 1024, KVMOD)
        else:
            p.vload4(dst, 5, sV, f"s{sOFF}", j * 1024, KVMOD)

    def lds_fn(unit):
        if unit >= 64:
            n, j = regtiles[(unit - 64) // 4], unit % 4
            return (n % NW) * SLOT + j * 1024
        i, j = unit // 4, unit % 4
        return (KV0 + i % NKV) * SLOT + j * 1024

    ld = Loader(p, 64 + 4 * len(regtiles), load_fn, lds_fn)
    if WARM:
        p.v("v_lshlrev_b32", 14, I(4), 14)
        p.s(f"s_lshl_b32 s{sT1}, s{sB}, 4")
        p.s(f"s_lshl_b32 s{sT2}, s{sT0}, 2")
        p.s(f"s_add_u32 s{sT1}, s{sT1}, s{sT2}")
        p.s(f"s_lshl_b32 s{sT2}, s{sT1}, 13")
        p.s(f"s_lshl_b32 s{sOFF}, s{sHKV}, 10")
        p.s(f"s_add_u32 s{sT2}, s{sT2}, s{sOFF}")
        for j in range(4):
            p.vload4(RB + 4 * (RING - 8 + j), 14, sWQ, f"s{sT2}", 0)
            p.s(f"s_add_u32 s{sT2}, s{sT2}, 8192")
        p.s(f"s_lshl_b32 s{sT2}, s{sB}, 14")
        for j in range(4):
            p.vload4(RB + 4 * (RING - 4 + j), 14, sWO, f"s{sT2}", j * 1024)
        ld.extra = 8
    ld.issue_upto(4 * KV_PRE)
    p.barrier()
    for s in range(NSTEP):
        p.barrier()
        ld.issue_upto(int(4 * (KV_PRE + min(s + 1, 16) * KV_FRAC + max(0, s - 15) * KV_FRAC2)) // 4 * 4)
        if s in (11, 14):
            ld.write_units(4)
        i = s - 16 + 1
        if 2 <= i < 16:
            ld.write_units(4)
        for u in REGP:
            if cstep(u - 4) == s - 1:
                ld.write_units(8)
        if s == 31:
            p.barrier()
    assert ld.written == ld.n
    p.s("s_endpgm")


WOV = 252
WARM = int(os.environ.get("WARM", "1"))

KV_PRE = int(os.environ.get("KV_PRE", "1"))
KV_RATE = int(os.environ.get("KV_RATE", "1"))
KV_START = int(os.environ.get("KV_START", "0"))
KVMOD = os.environ.get("KVMOD", " nt")
KV_FRAC = float(os.environ.get("KV_FRAC", "0.4"))
KV_FRAC2 = float(os.environ.get("KV_FRAC2", "1"))


def gen_main():
    p = Prog()
    p.raw(".text")
    p.raw(f".globl {NAME}_kernel")
    p.raw(".p2align 8")
    p.raw(f".type {NAME}_kernel,@function")
    p.label(f"{NAME}_kernel")
    p.s("s_cmp_ge_u32 s2, 256")
    p.s("s_cbranch_scc1 L_exit")
    p.s("s_load_dwordx16 s[4:19], s[0:1], 0")
    if DBG:
        p.s("s_memrealtime s[66:67]")
    p.s(f"s_and_b32 s{sHKV}, s2, 7")
    p.s(f"s_lshr_b32 s{sB}, s2, 3")
    p.v("v_lshrrev_b32", 1, I(6), 0)
    p.rfl(f"s{sWAVE}", 1)
    p.s("s_waitcnt lgkmcnt(0)")
    srd(p, sX, 4, 5, 32768)
    srd(p, sK, 6, 7, 131072)
    srd(p, sV, 8, 9, 131072)
    srd(p, sWQ, 10, 11, 4194304)
    srd(p, sWO, 12, 13, 4194304)
    srd(p, sWS, 18, 19, 65536)
    p.s(f"s_lshl_b32 s{sT0}, s{sB}, 15")
    add64(p, sX, f"s{sT0}")
    p.s(f"s_lshl_b32 s{sT0}, s2, 17")
    add64(p, sK, f"s{sT0}")
    add64(p, sV, f"s{sT0}")
    p.s(f"s_lshl_b32 s{sT0}, s{sHKV}, 5")
    p.s(f"s_add_u32 s{sT0}, s{sT0}, s{sB}")
    p.s(f"s_lshl_b32 s{sT0}, s{sT0}, 16")
    add64(p, sWS, f"s{sT0}")
    p.s(f"s_cmp_ge_u32 s{sWAVE}, 4")
    p.s("s_cbranch_scc1 L_kvload")
    gen_compute(p)
    gen_kvloader(p)
    p.label("L_exit")
    p.s("s_endpgm")
    return p


def gen_reduce():
    p = Prog()
    p.raw(".globl gqa_reduce_kernel")
    p.raw(".p2align 8")
    p.raw(".type gqa_reduce_kernel,@function")
    p.label("gqa_reduce_kernel")
    p.s("s_cmp_ge_u32 s2, 256")
    p.s("s_cbranch_scc1 L_rexit")
    p.s("s_load_dwordx2 s[4:5], s[0:1], 40")
    p.s("s_load_dwordx2 s[6:7], s[0:1], 56")
    p.v("v_lshrrev_b32", 1, I(6), 0)
    p.v("v_and_b32", 2, I(63), 0)
    p.s("s_lshl_b32 s3, s2, 2")
    p.v("v_add_u32", 1, "s3", 1)
    p.v("v_lshlrev_b32", 3, I(11), 1)
    p.v("v_lshlrev_b32", 4, I(4), 2)
    p.v("v_add_u32", 3, 3, 4)
    p.v("v_lshrrev_b32", 5, I(5), 1)
    p.v("v_lshlrev_b32", 5, I(5), 5)
    p.v("v_and_b32", 6, I(31), 2)
    p.v("v_add_u32", 5, 5, 6)
    p.v("v_lshlrev_b32", 5, I(10), 5)
    p.v("v_and_b32", 6, I(31), 1)
    p.v("v_lshlrev_b32", 6, I(5), 6)
    p.v("v_add_u32", 5, 5, 6)
    p.v("v_lshrrev_b32", 6, I(5), 2)
    p.v("v_lshlrev_b32", 6, I(4), 6)
    p.v("v_add_u32", 5, 5, 6)
    p.s("s_waitcnt lgkmcnt(0)")
    srd(p, 8, 4, 5, 1048576)
    srd(p, 12, 6, 7, 16777216)
    for hk in range(8):
        p.s(f"s_mov_b32 s{16+hk}, {hk*2097152}")
    for hk in range(8):
        p.vload4(8 + 8 * hk, 3, 12, f"s{16+hk}", 0)
        p.vload4(12 + 8 * hk, 3, 12, f"s{16+hk}", 1024)
    for hk in range(1, 8):
        p.vmcnt(14 - 2 * hk)
        for e in range(8):
            p.v("v_add_f32", 8 + e, 8 + e, 8 + 8 * hk + e)
    for e in range(4):
        p.v("v_cvt_pk_bf16_f32", 80 + e, 8 + 2 * e, 9 + 2 * e)
    p.vstore4(80, 5, 8, "0", 0)
    p.label("L_rexit")
    p.s("s_endpgm")
    return p


def kd(name, vgpr):
    return f""".amdhsa_kernel {name}
  .amdhsa_next_free_vgpr {vgpr}
  .amdhsa_next_free_sgpr 102
  .amdhsa_accum_offset {vgpr}
  .amdhsa_group_segment_fixed_size 0
  .amdhsa_kernarg_size 64
  .amdhsa_user_sgpr_count 2
  .amdhsa_user_sgpr_kernarg_segment_ptr 1
  .amdhsa_system_sgpr_workgroup_id_x 1
.end_amdhsa_kernel
"""


def main():
    m = gen_main()
    r = gen_reduce()
    txt = HEADER
    txt += f"; @launch kernel={NAME}_kernel grid=(256,1,1) block=(512,1,1) lds={LDS_BYTES}\n"
    txt += "; @launch kernel=gqa_reduce_kernel grid=(256,1,1) block=(256,1,1) lds=0\n"
    txt += '.amdgcn_target "amdgcn-amd-amdhsa--gfx950"\n'
    txt += "\n".join(m.lines) + "\n"
    txt += "\n".join(r.lines) + "\n"
    txt += '.section .rodata,"a"\n.p2align 6\n'
    txt += kd(f"{NAME}_kernel", 256)
    txt += ".p2align 6\n"
    txt += kd("gqa_reduce_kernel", 88)
    open(OUT, "w").write(txt)
    print("wrote", OUT, len(txt), "bytes", len(m.lines), "lines")


main()
```

```python
import sys, math

NAME = "standalone__gqa_block_cached__near_ridge"
import os
DBG = int(os.environ.get("DBG", "0"))
OUT = sys.argv[1] if len(sys.argv) > 1 else f"cdna_kernels/{NAME}.s"

HEADER = """; Kernarg layout for this problem (64 bytes, ptrs only, base s[0:1]):
"""


def R(a, n=1):
    return set(range(a, a + n))


def I(x):
    return str(x)


def vr(a, n):
    return f"v{a}" if n == 1 else f"v[{a}:{a+n-1}]"


class Ins:
    __slots__ = ("kind", "wr", "rd", "a", "b", "c", "d", "ws")

    def __init__(self, kind, wr=None, rd=None, a=None, b=None, c=None, d=None):
        self.kind = kind
        self.wr = wr or set()
        self.rd = rd or set()
        self.a, self.b, self.c, self.d = a, b, c, d
        self.ws = 1


VALUISH = ("valu", "trans", "perm", "rfl")


def need(p, c):
    n = 0
    if p.kind == "mfma":
        pd = p.wr
        if c.kind == "mfma":
            if (c.a | c.b) & pd:
                n = max(n, 12)
            if c.c & pd:
                n = max(n, 0 if c.c == pd else 10)
            elif c.wr & pd:
                n = max(n, 10)
        elif c.kind in VALUISH:
            if (c.rd | c.wr) & pd:
                n = max(n, 12)
            if c.wr & p.c:
                n = max(n, 7)
        elif c.kind in ("dsr", "dsw", "vml", "vms"):
            if (c.rd | c.wr) & pd:
                n = max(n, 12)
    elif p.kind in VALUISH:
        if c.kind == "mfma" and (c.a | c.b | c.c) & p.wr:
            n = max(n, 2)
        if p.kind == "trans" and c.kind != "mfma" and (c.rd & p.wr):
            n = max(n, 1)
        if c.kind == "perm" and (c.rd & p.wr):
            n = max(n, 2)
        if c.kind == "rfl" and (c.rd & p.wr):
            n = max(n, 1)
    elif p.kind in ("vms", "dsw"):
        if c.kind in VALUISH and (c.wr & p.rd):
            n = max(n, 2)
    elif p.kind == "m0w":
        if c.kind == "dma":
            n = max(n, 1)
    elif p.kind == "rfl_s":
        pass
    return n


class Prog:
    def __init__(self):
        self.lines = []
        self.hist = []
        self.lds_out = 0
        self.ts = None

    def raw(self, text):
        self.lines.append(text)

    def label(self, l):
        self.lines.append(f"{l}:")
        self.hist = []

    def _emit(self, text, ins):
        dist = 0
        req = 0
        for p in reversed(self.hist):
            r = need(p, ins) - dist
            req = max(req, r)
            dist += p.ws
            if dist > 16:
                break
        while req > 0:
            k = min(req, 8)
            self.lines.append(f"    s_nop {k-1}")
            nop = Ins("nop")
            nop.ws = k
            self.hist.append(nop)
            req -= k
        self.lines.append("    " + text)
        self.hist.append(ins)
        if len(self.hist) > 40:
            self.hist = self.hist[-40:]

    def s(self, text):
        self._emit(text, Ins("salu"))

    def m0(self, text):
        self._emit(text, Ins("m0w"))

    def nop(self, k):
        self.lines.append(f"    s_nop {k-1}")
        nop = Ins("nop")
        nop.ws = k
        self.hist.append(nop)

    def v(self, op, dst, *srcs, kind="valu", ndst=1):
        rd = set()
        ts = []
        for s_ in srcs:
            if isinstance(s_, int):
                rd.add(s_)
                ts.append(f"v{s_}")
            elif isinstance(s_, tuple):
                rd.add(s_[1])
                ts.append(f"-v{s_[1]}")
            else:
                ts.append(s_)
        self._emit(f"{op} {vr(dst, ndst)}, " + ", ".join(ts), Ins(kind, R(dst, ndst), rd))

    def trans(self, op, dst, src):
        self.v(op, dst, src, kind="trans")

    def perm_swap(self, a, b):
        self._emit(f"v_permlane32_swap_b32 v{a}, v{b}", Ins("perm", {a, b}, {a, b}))

    def rfl(self, sdst, src):
        self._emit(f"v_readfirstlane_b32 {sdst}, v{src}", Ins("rfl", set(), {src}))

    def mfma(self, d, a, b, c):
        cs = "0" if c is None else vr(c, 16)
        self._emit(
            f"v_mfma_f32_32x32x16_bf16 {vr(d,16)}, {vr(a,4)}, {vr(b,4)}, {cs}",
            Ins("mfma", R(d, 16), set(), R(a, 4), R(b, 4), set() if c is None else R(c, 16)),
        )

    def ds_read(self, op, dst, n, addr, off):
        assert 0 <= off < 65536, off
        self._emit(f"{op} {vr(dst,n)}, v{addr} offset:{off}", Ins("dsr", R(dst, n), {addr}))
        self.lds_out += 1
        return self.lds_out

    def ds_write128(self, addr, data, off):
        assert 0 <= off < 65536
        self._emit(f"ds_write_b128 v{addr}, {vr(data,4)} offset:{off}", Ins("dsw", set(), {addr} | R(data, 4)))
        self.lds_out += 1

    def lgkm(self, n):
        self._emit(f"s_waitcnt lgkmcnt({min(n,15)})", Ins("wait"))

    def vmcnt(self, n):
        assert n <= 63
        self._emit(f"s_waitcnt vmcnt({n})", Ins("wait"))

    def barrier(self):
        self._emit("s_barrier", Ins("wait"))
        if DBG and self.ts is not None:
            self.stamp()

    def stamp(self):
        self._emit("s_memtime s[60:61]", Ins("salu"))
        self._emit("s_waitcnt lgkmcnt(0)", Ins("wait"))
        self._emit(f"v_writelane_b32 v0, s60, {self.ts}", Ins("valu", {0}, set()))
        self.ts += 1

    def vload4(self, dst, voff, srd, soff, off, mod=""):
        assert 0 <= off < 4096
        self._emit(
            f"buffer_load_dwordx4 {vr(dst,4)}, v{voff}, s[{srd}:{srd+3}], {soff} offen offset:{off}{mod}",
            Ins("vml", R(dst, 4), {voff}),
        )

    def vstore4(self, data, voff, srd, soff, off, mod=""):
        assert 0 <= off < 4096
        self._emit(
            f"buffer_store_dwordx4 {vr(data,4)}, v{voff}, s[{srd}:{srd+3}], {soff} offen offset:{off}{mod}",
            Ins("vms", set(), {voff} | R(data, 4)),
        )

    def dma(self, voff, srd, soff, off, mod=""):
        assert 0 <= off < 4096
        self._emit(
            f"buffer_load_dwordx4 v{voff}, s[{srd}:{srd+3}], {soff} offen offset:{off}{mod} lds",
            Ins("dma", set(), {voff}),
        )

    def mfma16(self, d, a, b, c):
        cs = "0" if c is None else vr(c, 4)
        self._emit(
            f"v_mfma_f32_16x16x32_bf16 {vr(d,4)}, {vr(a,4)}, {vr(b,4)}, {cs}",
            Ins("mfma", R(d, 4), set(), R(a, 4), R(b, 4), set() if c is None else R(c, 4)),
        )

    def perm16_swap(self, a, b):
        self._emit(f"v_permlane16_swap_b32 v{a}, v{b}", Ins("perm", {a, b}, {a, b}))


SLOT = 16384
NKV = 8
IMG = 8 * SLOT
COMB = 0
LDS_BYTES = 10 * SLOT
KVSEQ = [("K", 0), ("K", 1)]
for t in range(2, 8):
    KVSEQ += [("V", t - 2), ("K", t)]
KVSEQ += [("V", 6), ("V", 7)]
assert len(KVSEQ) == 16

sB, sHKV, sWAVE = 20, 21, 22
sX, sK, sV, sWQ, sWO, sWS = 24, 28, 32, 36, 40, 44
sOFF, sPAR, sC, sT0, sT1, sT2 = 48, 49, 50, 51, 52, 53
sSEL0, sSEL1 = 54, 55
sROT = 58

vK = 1
vWQ = 1
vV = 9
vXA = 13
vWOA = 17
vSO = 19
vM, vL, vAL, vMC, vT0, vT1, vT2, vT3 = 20, 21, 22, 23, 24, 25, 26, 27
vU0, vU1, vU2, vU3 = 28, 29, 30, 31
ACC = 32
FR = 96
XB = 96
OB = 96
CLB = [128, 160, 192]
CFRG = 224
QB = 128
SB = 160
PB = 224

LLB = [16, 48, 80, 224]
LXB = 112
LKV = 128
LACC = 128
LFRG = 192
lXA = 12
lWOA = 6

C_SCALE = (128.0 ** -0.5) * math.log2(math.e)

SPLIT = float(os.environ.get("SPLIT", "0.64"))
HEAD = int(os.environ.get("HEAD", "30"))
WARM = int(os.environ.get("WARM", "1"))
KVMOD = os.environ.get("KVMOD", " nt")
STMOD = os.environ.get("STMOD", "")
CAP = int(os.environ.get("CAP", "12"))
NA_T = int(os.environ.get("NA_T", "9"))
NL = int(os.environ.get("NL", "9"))
PF0 = int(os.environ.get("PF0", "8"))


def f32hex(x):
    import struct

    return "0x%08x" % struct.unpack("<I", struct.pack("<f", x))[0]


def srd(p, dst, lo, hi, nrec):
    p.s(f"s_mov_b32 s{dst}, s{lo}")
    p.s(f"s_and_b32 s{dst+1}, s{hi}, 0xffff")
    p.s(f"s_mov_b32 s{dst+2}, {nrec}")
    p.s(f"s_mov_b32 s{dst+3}, 0x00020000")


def add64(p, reg, sval):
    p.s(f"s_add_u32 s{reg}, s{reg}, {sval}")
    p.s(f"s_addc_u32 s{reg+1}, s{reg+1}, 0")


class VM:
    def __init__(self, p):
        self.p = p
        self.n = 0
        self.tags = {}

    def op(self, k=1):
        self.n += k

    def tag(self, t):
        self.tags[t] = self.n

    def wait(self, t):
        self.p.vmcnt(min(63, self.n - self.tags[t]))


def mfma_stream(p, items, valu, nbuf_ahead, grp=2, head=0):
    nitem = len(items)
    marks = [None] * nitem
    issued = 0

    def issue(i):
        last = None
        for (op, dst, n, addr, off) in items[i]["reads"]:
            last = p.ds_read(op, dst, n, addr, off)
        marks[i] = last

    while issued < min(nbuf_ahead, nitem):
        issue(issued)
        issued += 1
    tot = sum(c for c, _ in valu)
    vi = 0
    done = 0
    while vi < len(valu) and done < head:
        done += valu[vi][0]
        valu[vi][1]()
        vi += 1
    base = done
    for i in range(nitem):
        if i % grp == 0:
            j = min(i + grp, nitem) - 1
            assert marks[j] is not None
            p.lgkm(p.lds_out - marks[j])
        for extra in items[i].get("pre", []):
            extra()
        p.mfma(*items[i]["mf"])
        if i % grp == grp - 1:
            while issued < nitem and issued <= i + nbuf_ahead:
                issue(issued)
                issued += 1
        while vi < len(valu) and done < base + (tot - base) * (i + 1) / nitem:
            done += valu[vi][0]
            valu[vi][1]()
            vi += 1
    while vi < len(valu):
        valu[vi][1]()
        vi += 1


def softmax_p(p, t):
    S = SB + 32 * (t & 1)
    P = PB + 16 * (t & 1)
    L = []

    def A(f, c=1):
        L.append((c, f))

    A(lambda: p.v("v_max3_f32", vT0, S, S + 1, S + 2))
    A(lambda: p.v("v_max3_f32", vT1, S + 3, S + 4, S + 5))
    for i in range(6, 30, 4):
        A(lambda i=i: p.v("v_max3_f32", vT0, vT0, S + i, S + i + 1))
        A(lambda i=i: p.v("v_max3_f32", vT1, vT1, S + i + 2, S + i + 3))
    A(lambda: p.v("v_max3_f32", vT0, vT0, S + 30, S + 31))
    A(lambda: p.v("v_max_f32", vT0, vT0, vT1))
    A(lambda: p.v("v_mov_b32", vT1, vT0))
    A(lambda: p.perm_swap(vT0, vT1))
    if t == 0:
        A(lambda: p.v("v_max_f32", vM, vT0, vT1))
    else:
        A(lambda: p.v("v_max3_f32", vT0, vT0, vT1, vM))
        A(lambda: p.v("v_sub_f32", vT1, vM, vT0))
        A(lambda: p.v("v_mul_f32", vT1, f"s{sC}", vT1))
        A(lambda: p.trans("v_exp_f32", vAL, vT1), 2)
        A(lambda: p.v("v_mov_b32", vM, vT0))
    A(lambda: p.v("v_mul_f32", vMC, f"s{sC}", vM))
    first = True
    for g in range(4):
        b0 = S + 8 * g
        for i in range(8):
            A(lambda i=i, b0=b0: p.v("v_fma_f32", b0 + i, b0 + i, f"s{sC}", ("neg", vMC)))
        for i in range(8):
            A(lambda i=i, b0=b0: p.trans("v_exp_f32", b0 + i, b0 + i), 2)
        for i in range(0, 8, 2):
            if first:
                if t == 0:
                    A(lambda b0=b0: p.v("v_mov_b32", vL, b0))
                else:
                    A(lambda b0=b0: p.v("v_fma_f32", vL, vL, vAL, b0))
                A(lambda b0=b0: p.v("v_mov_b32", vT2, b0 + 1))
                first = False
            else:
                A(lambda i=i, b0=b0: p.v("v_add_f32", vL, vL, b0 + i))
                A(lambda i=i, b0=b0: p.v("v_add_f32", vT2, vT2, b0 + i + 1))
        for i in range(4):
            A(lambda i=i, g=g, b0=b0: p.v("v_cvt_pk_bf16_f32", P + 4 * g + i, b0 + 2 * i, b0 + 2 * i + 1))
    A(lambda: p.v("v_add_f32", vL, vL, vT2))
    return L


def rescale(p):
    return [(1, lambda i=i: p.v("v_mul_f32", ACC + i, vAL, ACC + i)) for i in range(64)]


def split_cost(L, frac):
    tot = sum(c for c, _ in L)
    acc = 0
    for k, (c, _) in enumerate(L):
        if acc >= tot * frac:
            return L[:k], L[k:]
        acc += c
    return L, []


def lane_parts(p):
    lane, r_, h_, aq = vU0, vU1, vU2, vU3
    p.v("v_mbcnt_lo_u32_b32", lane, "-1", "0")
    p.v("v_mbcnt_hi_u32_b32", lane, "-1", lane)
    p.v("v_lshrrev_b32", h_, I(5), lane)
    p.v("v_bfe_u32", r_, lane, I(2), I(2))
    p.v("v_bfe_u32", aq, lane, I(4), I(1))
    p.v("v_lshlrev_b32", aq, I(2), aq)
    p.v("v_and_b32", vT0, I(1), lane)
    p.v("v_lshlrev_b32", vT0, I(1), vT0)
    p.v("v_or_b32", aq, aq, vT0)
    p.v("v_bfe_u32", vT0, lane, I(1), I(1))
    p.v("v_or_b32", aq, aq, vT0)
    p.v("v_lshlrev_b32", aq, I(3), aq)


def setup_kv_addr(p):
    lane_parts(p)
    lane, r_, h_, aq = vU0, vU1, vU2, vU3
    p.v("v_lshlrev_b32", vT0, I(2), h_)
    p.v("v_add_u32", vT0, vT0, r_)
    p.v("v_lshlrev_b32", vT0, I(8), vT0)
    p.v("v_add_u32", vT0, vT0, aq)
    for dt in range(4):
        p.v("v_xor_b32", vT1, I(dt), r_)
        p.v("v_lshlrev_b32", vT1, I(6), vT1)
        p.v("v_add_u32", vV + dt, vT0, vT1)
    p.v("v_and_b32", vT0, I(15), lane)
    p.v("v_lshlrev_b32", vT1, I(3), h_)
    p.v("v_xor_b32", vT0, vT0, vT1)
    p.v("v_lshlrev_b32", vT0, I(4), vT0)
    p.v("v_and_b32", vT1, I(31), lane)
    p.v("v_lshlrev_b32", vT1, I(8), vT1)
    for ks in range(8):
        p.v("v_xor_b32", vK + ks, I(ks << 4), vT0)
        p.v("v_add_u32", vK + ks, vK + ks, vT1)


def setup_img_addr(p, xa, lane, t0, t1):
    p.v("v_and_b32", t0, I(15), lane)
    p.v("v_lshrrev_b32", t1, I(4), lane)
    p.v("v_xor_b32", t1, t1, t0)
    p.v("v_lshlrev_b32", t1, I(4), t1)
    p.v("v_lshlrev_b32", t0, I(10), t0)
    p.v("v_add_u32", t0, I(IMG), t0)
    for m in range(4):
        p.v("v_xor_b32", xa + m, I(m << 6), t1)
        p.v("v_add_u32", xa + m, xa + m, t0)


def setup_wo_addr(p, woa, lane, t0, t1):
    p.v("v_and_b32", t0, I(15), lane)
    p.v("v_lshlrev_b32", t0, I(4), t0)
    p.v("v_lshrrev_b32", t1, I(4), lane)
    p.v("v_lshlrev_b32", t1, I(13), t1)
    p.v("v_add_u32", woa, t0, t1)
    p.v("v_add_u32", woa + 1, I(4096), woa)


def stream_w(p, kbs, LBs, FRG, ACCb, XBb, xa, vm, load_ops, preloaded, tagp, stamp=False):
    nblk = len(kbs)
    NB = len(LBs)

    def xread(n):
        kb = kbs[n]
        xb = XBb + 8 * (n & 1)
        p.ds_read("ds_read_b128", xb, 4, xa + (kb & 3), (kb >> 2) * 256)
        return p.ds_read("ds_read_b128", xb + 4, 4, xa + (kb & 3), (kb >> 2) * 256 + 16384)

    st = {"pi": 0}

    def perms_upto(lim):
        lim = min(lim, 32 * nblk)
        while st["pi"] < lim:
            pi = st["pi"]
            n, w = pi // 32, pi % 32
            if w == 0:
                vm.wait((tagp, n))
            j, pq = w // 4, w % 4
            c = j >> 1
            LB = LBs[n % NB]
            sel = sSEL1 if j & 1 else sSEL0
            p.v("v_perm_b32", FRG + 4 * j + pq, LB + 4 * (2 * pq + 1) + c, LB + 4 * (2 * pq) + c, f"s{sel}")
            st["pi"] += 1

    xm = {0: xread(0)}
    k = 0
    for n in range(nblk):
        if stamp and DBG and p.ts is not None:
            p.stamp()
        if n + 1 < nblk:
            xm[n + 1] = xread(n + 1)
        loads = []
        nn = n + NB - 1
        if n >= 1 and preloaded <= nn < nblk:
            loads = load_ops(nn)
        for j in range(8):
            for half in range(2):
                perms_upto(2 * k + 6)
                if j == 0 and half == 0:
                    p.lgkm(p.lds_out - xm[n])
                a = ACCb + 8 * j + 4 * half
                p.mfma16(a, FRG + 4 * j, XBb + 8 * (n & 1) + 4 * half, None if n == 0 else a)
                k += 1
                if half == 0 and j < len(loads):
                    loads[j]()
        if loads:
            vm.tag((tagp, nn))


def finish(p, ACCb, keep, tmp, out, va, vb, lane, t0, cgreg):
    p.v("v_lshlrev_b32", t0, I(4), lane)
    p.s(f"s_lshl_b32 s{sT0}, s{sWAVE}, 13")
    p.v("v_add_u32", va, f"s{sT0}", t0)
    p.s(f"s_xor_b32 s{sT0}, s{sT0}, {4 << 13}")
    p.v("v_add_u32", vb, f"s{sT0}", t0)
    for j in range(8):
        p.ds_write128(va, ACCb + 8 * j + 4 * (1 - keep), COMB + j * 1024)
    p.v("v_and_b32", t0, I(15), lane)
    p.v("v_lshlrev_b32", t0, I(10), t0)
    p.v("v_lshrrev_b32", va, I(4), lane)
    p.v("v_lshlrev_b32", va, I(6), va)
    p.v("v_add_u32", va, va, t0)
    p.s(f"s_and_b32 s{sT0}, s{sWAVE}, 3")
    p.s(f"s_lshl_b32 s{sT0}, s{sT0}, 8")
    p.s(f"s_add_u32 s{sT0}, s{sT0}, {keep * 16384}")
    p.v("v_add_u32", va, f"s{sT0}", va)
    p.lgkm(0)
    p.barrier()
    marks = []
    for j in range(8):
        marks.append(p.ds_read("ds_read_b128", tmp + 4 * j, 4, vb, COMB + j * 1024))
    for j in range(8):
        p.lgkm(p.lds_out - marks[j])
        for r in range(4):
            a = ACCb + 8 * j + 4 * keep + r
            p.v("v_add_f32", a, a, tmp + 4 * j + r)
    for r in range(4):
        for jp in range(4):
            p.v("v_cvt_pk_bf16_f32", out + 4 * r + jp, ACCb + 16 * jp + 4 * keep + r, ACCb + 16 * jp + 8 + 4 * keep + r)
        p.vstore4(out + 4 * r, va, sWS, "0", r * 16, STMOD)


def gen_compute(p):
    p.label("L_compute")
    lane = vU0
    p.v("v_and_b32", lane, I(63), 0)
    vm = VM(p)
    p.s(f"s_lshl_b32 s{sT0}, s{sWAVE}, 13")
    p.s(f"s_and_b32 s{sT1}, s{sWAVE}, 1")
    p.s(f"s_lshl_b32 s{sT1}, s{sT1}, 3")
    for i in range(8):
        p.s(f"s_add_u32 s{sT2}, s{sT1}, {i}")
        p.v("v_xor_b32", vT0 + (i & 3), f"s{sT2}", lane)
        p.v("v_lshlrev_b32", vT0 + (i & 3), I(4), vT0 + (i & 3))
        if i % 4 == 0:
            p.s(f"s_add_u32 s{sOFF}, s{sT0}, {i*1024}")
            p.m0(f"s_add_u32 m0, s{sT0}, {IMG + i*1024}")
        p.dma(vT0 + (i & 3), sX, f"s{sOFF}", (i & 3) * 1024)
        vm.op()
    vm.tag("x")
    p.v("v_and_b32", vT0, I(15), lane)
    p.v("v_lshlrev_b32", vT0, I(4), vT0)
    p.v("v_lshrrev_b32", vT1, I(4), lane)
    p.v("v_lshlrev_b32", vT1, I(16), vT1)
    p.v("v_add_u32", vWQ, vT0, vT1)
    for i in range(1, 8):
        p.v("v_add_u32", vWQ + i, I(i * 8192), vWQ)
    p.s(f"s_lshl_b32 s{sPAR}, s{sWAVE}, 8")
    p.s(f"s_lshl_b32 s{sT1}, s{sHKV}, 10")
    p.s(f"s_add_u32 s{sT1}, s{sT1}, s{sPAR}")
    add64(p, sWQ, f"s{sT1}")
    p.s(f"s_sub_u32 s{sWQ+2}, s{sWQ+2}, s{sT1}")
    p.s(f"s_lshl_b32 s{sT1}, s{sHKV}, 19")
    p.s(f"s_add_u32 s{sT1}, s{sT1}, s{sPAR}")
    add64(p, sWO, f"s{sT1}")
    p.s(f"s_sub_u32 s{sWO+2}, s{sWO+2}, s{sT1}")

    def wq_ops(n):
        ops = []
        for i in range(8):
            def f(i=i, n=n):
                if i == 0:
                    p.s(f"s_mov_b32 s{sOFF}, {n*262144}")
                p.vload4(CLB[n % 3] + 4 * i, vWQ + i, sWQ, f"s{sOFF}", 0)
                vm.op()
            ops.append(f)
        return ops

    for n in range(3):
        for f in wq_ops(n):
            f()
        vm.tag(("wq", n))
    setup_img_addr(p, vXA, lane, vT0, vT1)
    p.s(f"s_mov_b32 s{sC}, {f32hex(C_SCALE)}")
    if DBG:
        p.s("s_memrealtime s[62:63]")
        p.ts = 0
        p.stamp()
    vm.wait("x")
    p.barrier()
    stream_w(p, list(range(16)), CLB, CFRG, ACC, XB, vXA, vm, wq_ops, 3, "wq", stamp=True)
    setup_kv_addr(p)
    setup_wo_addr(p, vWOA, vU0, vT0, vT1)
    for r in range(4):
        for jp in range(4):
            for half in range(2):
                p.v("v_cvt_pk_bf16_f32", QB + 16 * half + 4 * r + jp, ACC + 16 * jp + 4 * half + r,
                    ACC + 16 * jp + 8 + 4 * half + r)
    for i in range(16):
        p.perm16_swap(QB + i, QB + 16 + i)

    cbs = list(range(NL, 16))

    def wo_ops(n):
        ops = []
        for i in range(8):
            def f(i=i, n=n):
                if i == 0:
                    p.s(f"s_mov_b32 s{sOFF}, {cbs[n]*32768}")
                p.vload4(CLB[n % 3] + 4 * i, vWOA + (i >> 2), sWO, f"s{sOFF}", (i & 3) * 1024)
                vm.op()
            ops.append(f)
        return ops

    carry = []
    for si, (kind, t) in enumerate(KVSEQ):
        p.barrier()
        if si in (4, 8, 12):
            op = "v_add_u32" if si != 8 else "v_subrev_u32"
            for r in list(range(vK, vK + 8)) + list(range(vV, vV + 4)):
                p.v(op, r, I(65536), r)
        if si == 15:
            for n in range(min(3, len(cbs))):
                for f in wo_ops(n):
                    f()
                vm.tag(("wo", n))
        base = (si % 4) * SLOT
        items = []
        fi = 0
        if kind == "K":
            S = SB + 32 * (t & 1)
            for ks in range(8):
                for kt in range(2):
                    f = FR + 4 * (fi % 8)
                    fi += 1
                    reads = [("ds_read_b128", f, 4, vK + ks, base + kt * 8192)]
                    c = None if ks == 0 else S + 16 * kt
                    items.append(dict(reads=reads, mf=(S + 16 * kt, f, QB + 4 * ks, c)))
            if t == 1:
                valu = softmax_p(p, 0)
            elif t >= 2:
                valu = rescale(p) + carry
            else:
                valu = []
            carry = []
            mfma_stream(p, items, valu, 8, grp=2, head=HEAD)
        else:
            P = PB + 16 * (t & 1)
            for ks in range(4):
                for dt in range(4):
                    f = FR + 4 * (fi % 8)
                    fi += 1
                    reads = [
                        ("ds_read_b64_tr_b16", f, 2, vV + dt, base + ks * 4096),
                        ("ds_read_b64_tr_b16", f + 2, 2, vV + dt, base + ks * 4096 + 2048),
                    ]
                    c = None if (t == 0 and ks == 0) else ACC + 16 * dt
                    items.append(dict(reads=reads, mf=(ACC + 16 * dt, f, P + 4 * ks, c)))
            if t == 7:
                items[0]["pre"] = [f for _, f in rescale(p)]
                valu = []
            elif t == 6:
                valu = softmax_p(p, 7)
            else:
                valu, carry = split_cost(softmax_p(p, t + 1), SPLIT)
            mfma_stream(p, items, valu, 6, grp=2, head=HEAD)
        p.lgkm(0)
    p.v("v_mov_b32", vT0, vL)
    p.v("v_mov_b32", vT1, vL)
    p.perm_swap(vT0, vT1)
    p.v("v_add_f32", vT0, vT0, vT1)
    p.trans("v_rcp_f32", vT0, vT0)
    lane, h_ = vU0, vU2
    p.v("v_mbcnt_lo_u32_b32", lane, "-1", "0")
    p.v("v_mbcnt_hi_u32_b32", lane, "-1", lane)
    p.v("v_lshrrev_b32", h_, I(5), lane)
    p.v("v_and_b32", vT2, I(15), lane)
    p.v("v_xor_b32", vT2, vT2, h_)
    p.v("v_lshlrev_b32", vT2, I(4), vT2)
    p.v("v_and_b32", vT1, I(31), lane)
    p.v("v_lshlrev_b32", vT1, I(10), vT1)
    p.v("v_add_u32", vT1, I(IMG), vT1)
    p.v("v_add_u32", vT1, f"s{sPAR}", vT1)
    for kk in range(8):
        p.v("v_xor_b32", vK + kk, I(kk << 5), vT2)
        p.v("v_add_u32", vK + kk, vK + kk, vT1)
    for kk in range(8):
        for i in range(4 * kk, 4 * kk + 4):
            p.v("v_mul_f32", ACC + 2 * i, vT0, ACC + 2 * i)
            p.v("v_mul_f32", ACC + 2 * i + 1, vT0, ACC + 2 * i + 1)
            p.v("v_cvt_pk_bf16_f32", OB + i, ACC + 2 * i, ACC + 2 * i + 1)
        p.ds_write128(vK + kk, OB + 4 * kk, 0)
    p.lgkm(0)
    p.barrier()
    stream_w(p, cbs, CLB, CFRG, ACC, XB, vXA, vm, wo_ops, 3, "wo", stamp=True)
    finish(p, ACC, 0, CLB[0], CLB[1], vK, vK + 1, vU0, vT0, None)
    if DBG:
        p.stamp()
        p.vmcnt(0)
        p.stamp()
        print("nstamps", p.ts, file=sys.stderr)
        p.ts = None
        p.s("s_memrealtime s[60:61]")
        p.s("s_waitcnt lgkmcnt(0)")
        p.s("s_sub_u32 s60, s60, s62")
        p.raw("    v_writelane_b32 v0, s60, 63")
        p.s(f"s_cmp_lg_u32 s{sWAVE}, 0")
        p.s("s_cbranch_scc1 L_exit")
        p.s("s_memrealtime s[60:61]")
        p.s("s_waitcnt lgkmcnt(0)")
        p.s("s_mov_b32 s68, s18")
        p.s("s_and_b32 s69, s19, 0xffff")
        p.s("s_mov_b32 s70, 0x4000000")
        p.s("s_mov_b32 s71, 0x00020000")
        p.raw("    v_mov_b32 v2, s66")
        p.raw("    v_mov_b32 v3, s62")
        p.raw("    v_mov_b32 v4, s60")
        p.raw("    v_mov_b32 v5, 0")
        p.s("s_lshl_b32 s72, s2, 4")
        p.s("s_add_u32 s72, s72, 0x2000000")
        p.raw("    v_mov_b32 v6, 0")
        p.raw("    buffer_store_dwordx4 v[2:5], v6, s[68:71], s72 offen")
        p.s(f"s_cmp_lg_u32 s2, {DBG-1}")
        p.s("s_cbranch_scc1 L_exit")
        srd(p, 64, 16, 17, 256)
        p.v("v_mbcnt_lo_u32_b32", 1, "-1", "0")
        p.v("v_mbcnt_hi_u32_b32", 1, "-1", 1)
        p.v("v_lshlrev_b32", 1, I(2), 1)
        p.raw("    buffer_store_dword v0, v1, s[64:67], 0 offen")
    p.s("s_endpgm")


def gen_loader(p):
    p.label("L_kvload")
    vm = VM(p)
    L = 9
    p.v("v_and_b32", L, I(63), 0)
    p.v("v_lshrrev_b32", 11, I(4), L)
    p.v("v_and_b32", 12, I(15), L)
    p.v("v_lshlrev_b32", 13, I(8), 11)
    for j in range(4):
        p.v("v_add_u32", 14, I(4 * j), 11)
        p.v("v_xor_b32", 14, 14, 12)
        p.v("v_lshlrev_b32", 14, I(4), 14)
        p.v("v_add_u32", 1 + j, 14, 13)
    p.v("v_lshlrev_b32", 14, I(2), 11)
    p.v("v_xor_b32", 14, 14, 12)
    p.v("v_lshlrev_b32", 14, I(4), 14)
    p.v("v_add_u32", 5, 14, 13)
    p.s(f"s_add_u32 s{sROT}, s{sB}, s{sHKV}")
    p.s(f"s_and_b32 s{sT0}, s{sWAVE}, 3")
    p.s(f"s_lshl_b32 s{sPAR}, s{sT0}, 12")
    p.v("v_and_b32", 8, I(63), 0)
    p.v("v_lshlrev_b32", 9, I(4), 8)
    p.v("v_add_u32", 9, f"s{sPAR}", 9)
    p.v("v_add_u32", 10, I(65536), 9)
    add64(p, sK, f"s{sPAR}")
    p.s(f"s_sub_u32 s{sK+2}, s{sK+2}, s{sPAR}")
    add64(p, sV, f"s{sPAR}")
    p.s(f"s_sub_u32 s{sV+2}, s{sV+2}, s{sPAR}")
    if WARM:
        p.v("v_lshlrev_b32", 14, I(4), 8)
        p.s(f"s_lshl_b32 s{sT1}, s{sB}, 4")
        p.s(f"s_lshl_b32 s{sT2}, s{sT0}, 2")
        p.s(f"s_add_u32 s{sT1}, s{sT1}, s{sT2}")
        p.s(f"s_lshl_b32 s{sT2}, s{sT1}, 13")
        p.s(f"s_lshl_b32 s{sOFF}, s{sHKV}, 10")
        p.s(f"s_add_u32 s{sT2}, s{sT2}, s{sOFF}")
        for j in range(4):
            p.vload4(LLB[0] + 4 * j, 14, sWQ, f"s{sT2}", 0)
            vm.op()
            p.s(f"s_add_u32 s{sT2}, s{sT2}, 8192")
        p.s(f"s_lshl_b32 s{sT2}, s{sHKV}, 19")
        p.s(f"s_lshl_b32 s{sT1}, s{sT1}, 10")
        p.s(f"s_add_u32 s{sT2}, s{sT2}, s{sT1}")
        for j in range(4):
            p.vload4(LLB[0] + 16 + 4 * j, 14, sWO, f"s{sT2}", j * 1024)
            vm.op()
    p.s(f"s_lshl_b32 s{sT1}, s{sHKV}, 19")
    p.s(f"s_lshl_b32 s{sT2}, s{sT0}, 8")
    p.s(f"s_add_u32 s{sT1}, s{sT1}, s{sT2}")
    add64(p, sWO, f"s{sT1}")
    p.s(f"s_sub_u32 s{sWO+2}, s{sWO+2}, s{sT1}")
    setup_wo_addr(p, lWOA, 8, 14, 15)
    setup_img_addr(p, lXA, 8, 11, 15)

    def issue_tile(i):
        kind, t = KVSEQ[i]
        p.s(f"s_add_u32 s{sOFF}, s{sROT}, {t}")
        p.s(f"s_and_b32 s{sOFF}, s{sOFF}, 7")
        p.s(f"s_lshl_b32 s{sOFF}, s{sOFF}, 14")
        if i < 8:
            p.m0(f"s_add_u32 m0, s{sPAR}, {i*SLOT}")
        for j in range(4):
            vo = 1 + j if kind == "K" else 5
            sr = sK if kind == "K" else sV
            if i < 8:
                p.dma(vo, sr, f"s{sOFF}", j * 1024, KVMOD)
            else:
                p.vload4(LKV + 16 * (i - 8) + 4 * j, vo, sr, f"s{sOFF}", j * 1024, KVMOD)
            vm.op()
        vm.tag(("kv", i))

    lbs = list(range(NL))

    def wo_ops(n):
        ops = []
        for i in range(8):
            def f(i=i, n=n):
                if i == 0:
                    p.s(f"s_mov_b32 s{sOFF}, {lbs[n]*32768}")
                p.vload4(LLB[n % 4] + 4 * i, lWOA + (i >> 2), sWO, f"s{sOFF}", (i & 3) * 1024)
                vm.op()
            ops.append(f)
        return ops

    issue_tile(0)
    issue_tile(1)
    p.barrier()
    for i in range(2, NA_T):
        p.vmcnt(max(0, CAP - 4))
        issue_tile(i)
    vm.wait(("kv", 1))
    pf = {PF0: 0, PF0 + 1: 1, PF0 + 2: 2, 14: 3}
    for s in range(16):
        p.barrier()
        if NA_T + s < 16:
            issue_tile(NA_T + s)
        i = s + 2
        if i < 16:
            vm.wait(("kv", i))
            if i >= 8:
                for j in range(4):
                    a = (i % 8) * SLOT + j * 1024
                    p.ds_write128(9 + a // 65536, LKV + 16 * (i - 8) + 4 * j, a % 65536)
                p.lgkm(0)
        if s in pf and pf[s] < NL:
            for f in wo_ops(pf[s]):
                f()
            vm.tag(("wo", pf[s]))
    p.barrier()
    stream_w(p, lbs, LLB, LFRG, LACC, LXB, lXA, vm, wo_ops, 4, "wo")
    finish(p, LACC, 1, LLB[0], LLB[1], 1, 2, 8, 3, None)
    p.s("s_endpgm")


def gen_main():
    p = Prog()
    p.raw(".text")
    p.raw(f".globl {NAME}_kernel")
    p.raw(".p2align 8")
    p.raw(f".type {NAME}_kernel,@function")
    p.label(f"{NAME}_kernel")
    p.s("s_cmp_ge_u32 s2, 256")
    p.s("s_cbranch_scc1 L_exit")
    p.s("s_load_dwordx16 s[4:19], s[0:1], 0")
    if DBG:
        p.s("s_memrealtime s[66:67]")
    p.s(f"s_and_b32 s{sHKV}, s2, 7")
    p.s(f"s_lshr_b32 s{sB}, s2, 3")
    p.v("v_lshrrev_b32", 1, I(6), 0)
    p.rfl(f"s{sWAVE}", 1)
    p.s(f"s_mov_b32 s{sSEL0}, 0x05040100")
    p.s(f"s_mov_b32 s{sSEL1}, 0x07060302")
    p.s("s_waitcnt lgkmcnt(0)")
    srd(p, sX, 4, 5, 32768)
    srd(p, sK, 6, 7, 131072)
    srd(p, sV, 8, 9, 131072)
    srd(p, sWQ, 10, 11, 4194304)
    srd(p, sWO, 12, 13, 4194304)
    srd(p, sWS, 18, 19, 32768)
    p.s(f"s_lshl_b32 s{sT0}, s{sB}, 15")
    add64(p, sX, f"s{sT0}")
    p.s(f"s_lshl_b32 s{sT0}, s2, 17")
    add64(p, sK, f"s{sT0}")
    add64(p, sV, f"s{sT0}")
    p.s(f"s_lshl_b32 s{sT0}, s{sHKV}, 5")
    p.s(f"s_add_u32 s{sT0}, s{sT0}, s{sB}")
    p.s(f"s_lshl_b32 s{sT0}, s{sT0}, 15")
    add64(p, sWS, f"s{sT0}")
    p.s(f"s_cmp_ge_u32 s{sWAVE}, 4")
    p.s("s_cbranch_scc1 L_kvload")
    gen_compute(p)
    gen_loader(p)
    p.label("L_exit")
    p.s("s_endpgm")
    return p


def gen_reduce():
    p = Prog()
    p.raw(".globl gqa_reduce_kernel")
    p.raw(".p2align 8")
    p.raw(".type gqa_reduce_kernel,@function")
    p.label("gqa_reduce_kernel")
    p.s("s_cmp_ge_u32 s2, 256")
    p.s("s_cbranch_scc1 L_rexit")
    p.s("s_load_dwordx2 s[4:5], s[0:1], 40")
    p.s("s_load_dwordx2 s[6:7], s[0:1], 56")
    p.s("s_lshl_b32 s3, s2, 12")
    p.v("v_and_b32", 1, I(255), 0)
    p.v("v_lshlrev_b32", 1, I(4), 1)
    p.v("v_add_u32", 1, "s3", 1)
    p.s("s_waitcnt lgkmcnt(0)")
    srd(p, 8, 4, 5, 1048576)
    srd(p, 12, 6, 7, 8388608)
    for hk in range(8):
        p.s(f"s_mov_b32 s{16+hk}, {hk*1048576}")
    for hk in range(8):
        p.vload4(8 + 4 * hk, 1, 12, f"s{16+hk}", 0)
    for hk in range(8):
        p.vmcnt(7 - hk)
        for e in range(4):
            src = 8 + 4 * hk + e
            if hk == 0:
                p.v("v_lshlrev_b32", 40 + 2 * e, I(16), src)
                p.v("v_and_b32", 41 + 2 * e, "0xffff0000", src)
            else:
                p.v("v_lshlrev_b32", 48, I(16), src)
                p.v("v_and_b32", 49, "0xffff0000", src)
                p.v("v_add_f32", 40 + 2 * e, 40 + 2 * e, 48)
                p.v("v_add_f32", 41 + 2 * e, 41 + 2 * e, 49)
    for e in range(4):
        p.v("v_cvt_pk_bf16_f32", 50 + e, 40 + 2 * e, 41 + 2 * e)
    p.vstore4(50, 1, 8, "0", 0)
    p.label("L_rexit")
    p.s("s_endpgm")
    return p


def kd(name, vgpr):
    return f""".amdhsa_kernel {name}
  .amdhsa_next_free_vgpr {vgpr}
  .amdhsa_next_free_sgpr 102
  .amdhsa_accum_offset {vgpr}
  .amdhsa_group_segment_fixed_size 0
  .amdhsa_kernarg_size 64
  .amdhsa_user_sgpr_count 2
  .amdhsa_user_sgpr_kernarg_segment_ptr 1
  .amdhsa_system_sgpr_workgroup_id_x 1
.end_amdhsa_kernel
"""


def main():
    m = gen_main()
    r = gen_reduce()
    txt = HEADER
    txt += f"; @launch kernel={NAME}_kernel grid=(256,1,1) block=(512,1,1) lds={LDS_BYTES}\n"
    txt += "; @launch kernel=gqa_reduce_kernel grid=(256,1,1) block=(256,1,1) lds=0\n"
    txt += '.amdgcn_target "amdgcn-amd-amdhsa--gfx950"\n'
    txt += "\n".join(m.lines) + "\n"
    txt += "\n".join(r.lines) + "\n"
    txt += '.section .rodata,"a"\n.p2align 6\n'
    txt += kd(f"{NAME}_kernel", 256)
    txt += ".p2align 6\n"
    txt += kd("gqa_reduce_kernel", 56)
    open(OUT, "w").write(txt)
    print("wrote", OUT, len(txt), "bytes", len(m.lines), "lines")


main()
```

```python
import sys, math

NAME = "standalone__gqa_block_cached__near_ridge"
import os
DBG = int(os.environ.get("DBG", "0"))
OUT = sys.argv[1] if len(sys.argv) > 1 else f"cdna_kernels/{NAME}.s"

HEADER = """; Kernarg layout for this problem (64 bytes, ptrs only, base s[0:1]):
"""


def R(a, n=1):
    return set(range(a, a + n))


def I(x):
    return str(x)


def vr(a, n):
    return f"v{a}" if n == 1 else f"v[{a}:{a+n-1}]"


class Ins:
    __slots__ = ("kind", "wr", "rd", "a", "b", "c", "d", "ws")

    def __init__(self, kind, wr=None, rd=None, a=None, b=None, c=None, d=None):
        self.kind = kind
        self.wr = wr or set()
        self.rd = rd or set()
        self.a, self.b, self.c, self.d = a, b, c, d
        self.ws = 1


VALUISH = ("valu", "trans", "perm", "rfl")


def need(p, c):
    n = 0
    if p.kind == "mfma":
        pd = p.wr
        if c.kind == "mfma":
            if (c.a | c.b) & pd:
                n = max(n, 12)
            if c.c & pd:
                n = max(n, 0 if c.c == pd else 10)
            elif c.wr & pd:
                n = max(n, 10)
        elif c.kind in VALUISH:
            if (c.rd | c.wr) & pd:
                n = max(n, 12)
            if c.wr & p.c:
                n = max(n, 7)
        elif c.kind in ("dsr", "dsw", "vml", "vms"):
            if (c.rd | c.wr) & pd:
                n = max(n, 12)
    elif p.kind in VALUISH:
        if c.kind == "mfma" and (c.a | c.b | c.c) & p.wr:
            n = max(n, 2)
        if p.kind == "trans" and c.kind != "mfma" and (c.rd & p.wr):
            n = max(n, 1)
        if c.kind == "perm" and (c.rd & p.wr):
            n = max(n, 2)
        if c.kind == "rfl" and (c.rd & p.wr):
            n = max(n, 1)
    elif p.kind in ("vms", "dsw"):
        if c.kind in VALUISH and (c.wr & p.rd):
            n = max(n, 2)
    elif p.kind == "m0w":
        if c.kind == "dma":
            n = max(n, 1)
    elif p.kind == "rfl_s":
        pass
    return n


class Prog:
    def __init__(self):
        self.lines = []
        self.hist = []
        self.lds_out = 0
        self.ts = None

    def raw(self, text):
        self.lines.append(text)

    def label(self, l):
        self.lines.append(f"{l}:")
        self.hist = []

    def _emit(self, text, ins):
        dist = 0
        req = 0
        for p in reversed(self.hist):
            r = need(p, ins) - dist
            req = max(req, r)
            dist += p.ws
            if dist > 16:
                break
        while req > 0:
            k = min(req, 8)
            self.lines.append(f"    s_nop {k-1}")
            nop = Ins("nop")
            nop.ws = k
            self.hist.append(nop)
            req -= k
        self.lines.append("    " + text)
        self.hist.append(ins)
        if len(self.hist) > 40:
            self.hist = self.hist[-40:]

    def s(self, text):
        self._emit(text, Ins("salu"))

    def m0(self, text):
        self._emit(text, Ins("m0w"))

    def nop(self, k):
        self.lines.append(f"    s_nop {k-1}")
        nop = Ins("nop")
        nop.ws = k
        self.hist.append(nop)

    def v(self, op, dst, *srcs, kind="valu", ndst=1):
        rd = set()
        ts = []
        for s_ in srcs:
            if isinstance(s_, int):
                rd.add(s_)
                ts.append(f"v{s_}")
            elif isinstance(s_, tuple):
                rd.add(s_[1])
                ts.append(f"-v{s_[1]}")
            else:
                ts.append(s_)
        self._emit(f"{op} {vr(dst, ndst)}, " + ", ".join(ts), Ins(kind, R(dst, ndst), rd))

    def trans(self, op, dst, src):
        self.v(op, dst, src, kind="trans")

    def perm_swap(self, a, b):
        self._emit(f"v_permlane32_swap_b32 v{a}, v{b}", Ins("perm", {a, b}, {a, b}))

    def rfl(self, sdst, src):
        self._emit(f"v_readfirstlane_b32 {sdst}, v{src}", Ins("rfl", set(), {src}))

    def mfma(self, d, a, b, c):
        cs = "0" if c is None else vr(c, 16)
        self._emit(
            f"v_mfma_f32_32x32x16_bf16 {vr(d,16)}, {vr(a,4)}, {vr(b,4)}, {cs}",
            Ins("mfma", R(d, 16), set(), R(a, 4), R(b, 4), set() if c is None else R(c, 16)),
        )

    def ds_read(self, op, dst, n, addr, off):
        assert 0 <= off < 65536, off
        self._emit(f"{op} {vr(dst,n)}, v{addr} offset:{off}", Ins("dsr", R(dst, n), {addr}))
        self.lds_out += 1
        return self.lds_out

    def ds_write128(self, addr, data, off):
        assert 0 <= off < 65536
        self._emit(f"ds_write_b128 v{addr}, {vr(data,4)} offset:{off}", Ins("dsw", set(), {addr} | R(data, 4)))
        self.lds_out += 1

    def lgkm(self, n):
        self._emit(f"s_waitcnt lgkmcnt({min(n,15)})", Ins("wait"))

    def vmcnt(self, n):
        assert n <= 63
        self._emit(f"s_waitcnt vmcnt({n})", Ins("wait"))

    def barrier(self):
        self._emit("s_barrier", Ins("wait"))
        if DBG and self.ts is not None:
            self.stamp()

    def stamp(self):
        self._emit("s_memtime s[60:61]", Ins("salu"))
        self._emit("s_waitcnt lgkmcnt(0)", Ins("wait"))
        self._emit(f"v_writelane_b32 v0, s60, {self.ts}", Ins("valu", {0}, set()))
        self.ts += 1

    def vload4(self, dst, voff, srd, soff, off, mod=""):
        assert 0 <= off < 4096
        self._emit(
            f"buffer_load_dwordx4 {vr(dst,4)}, v{voff}, s[{srd}:{srd+3}], {soff} offen offset:{off}{mod}",
            Ins("vml", R(dst, 4), {voff}),
        )

    def vstore4(self, data, voff, srd, soff, off, mod=""):
        assert 0 <= off < 4096
        self._emit(
            f"buffer_store_dwordx4 {vr(data,4)}, v{voff}, s[{srd}:{srd+3}], {soff} offen offset:{off}{mod}",
            Ins("vms", set(), {voff} | R(data, 4)),
        )

    def dma(self, voff, srd, soff, off, mod=""):
        assert 0 <= off < 4096
        self._emit(
            f"buffer_load_dwordx4 v{voff}, s[{srd}:{srd+3}], {soff} offen offset:{off}{mod} lds",
            Ins("dma", set(), {voff}),
        )

    def mfma16(self, d, a, b, c):
        cs = "0" if c is None else vr(c, 4)
        self._emit(
            f"v_mfma_f32_16x16x32_bf16 {vr(d,4)}, {vr(a,4)}, {vr(b,4)}, {cs}",
            Ins("mfma", R(d, 4), set(), R(a, 4), R(b, 4), set() if c is None else R(c, 4)),
        )

    def perm16_swap(self, a, b):
        self._emit(f"v_permlane16_swap_b32 v{a}, v{b}", Ins("perm", {a, b}, {a, b}))


SLOT = 16384
NKV = 8
IMG = 8 * SLOT
COMB = 0
LDS_BYTES = 10 * SLOT
KVSEQ = [("K", 0), ("K", 1)]
for t in range(2, 8):
    KVSEQ += [("V", t - 2), ("K", t)]
KVSEQ += [("V", 6), ("V", 7)]
assert len(KVSEQ) == 16

sB, sHKV, sWAVE = 20, 21, 22
sX, sK, sV, sWQ, sWO, sWS = 24, 28, 32, 36, 40, 44
sOFF, sPAR, sC, sT0, sT1, sT2 = 48, 49, 50, 51, 52, 53
sSEL0, sSEL1 = 54, 55
sROT = 58

vK = 1
vWQ = 1
vV = 9
vXA = 13
vWOA = 17
vSO = 19
vM, vL, vAL, vMC, vT0, vT1, vT2, vT3 = 20, 21, 22, 23, 24, 25, 26, 27
vU0, vU1, vU2, vU3 = 28, 29, 30, 31
ACC = 32
FR = 96
XB = 96
OB = 96
CLB = [128, 160, 192]
CFRG = 224
QB = 128
SB = 160
PB = 224

LLB = [16, 48, 80, 224]
LXB = 112
LKV = 128
LACC = 128
LFRG = 192
lXA = 12
lWOA = 6

C_SCALE = (128.0 ** -0.5) * math.log2(math.e)

SPLIT = float(os.environ.get("SPLIT", "0.64"))
HEAD = int(os.environ.get("HEAD", "30"))
WARM = int(os.environ.get("WARM", "1"))
KVMOD = os.environ.get("KVMOD", " nt")
STMOD = os.environ.get("STMOD", "")
CAP = int(os.environ.get("CAP", "12"))
NA_T = int(os.environ.get("NA_T", "9"))
NL = int(os.environ.get("NL", "7"))
PF0 = int(os.environ.get("PF0", "10"))
NPRE = int(os.environ.get("NPRE", "1"))
BA_AT = int(os.environ.get("BA_AT", "13"))
NB_A = int(os.environ.get("NB_A", "4"))
KVPS = int(os.environ.get("KVPS", "1"))
NTR = int(os.environ.get("NTR", "0"))
CAPU = int(os.environ.get("CAPU", "2"))
USE_BA = int(os.environ.get("USE_BA", "1"))


def f32hex(x):
    import struct

    return "0x%08x" % struct.unpack("<I", struct.pack("<f", x))[0]


def srd(p, dst, lo, hi, nrec):
    p.s(f"s_mov_b32 s{dst}, s{lo}")
    p.s(f"s_and_b32 s{dst+1}, s{hi}, 0xffff")
    p.s(f"s_mov_b32 s{dst+2}, {nrec}")
    p.s(f"s_mov_b32 s{dst+3}, 0x00020000")


def add64(p, reg, sval):
    p.s(f"s_add_u32 s{reg}, s{reg}, {sval}")
    p.s(f"s_addc_u32 s{reg+1}, s{reg+1}, 0")


class VM:
    def __init__(self, p):
        self.p = p
        self.n = 0
        self.tags = {}

    def op(self, k=1):
        self.n += k

    def tag(self, t):
        self.tags[t] = self.n

    def wait(self, t):
        self.p.vmcnt(min(63, self.n - self.tags[t]))


def mfma_stream(p, items, valu, nbuf_ahead, grp=2, head=0):
    nitem = len(items)
    marks = [None] * nitem
    issued = 0

    def issue(i):
        last = None
        for (op, dst, n, addr, off) in items[i]["reads"]:
            last = p.ds_read(op, dst, n, addr, off)
        marks[i] = last

    while issued < min(nbuf_ahead, nitem):
        issue(issued)
        issued += 1
    tot = sum(c for c, _ in valu)
    vi = 0
    done = 0
    while vi < len(valu) and done < head:
        done += valu[vi][0]
        valu[vi][1]()
        vi += 1
    base = done
    for i in range(nitem):
        if i % grp == 0:
            j = min(i + grp, nitem) - 1
            assert marks[j] is not None
            p.lgkm(p.lds_out - marks[j])
        for extra in items[i].get("pre", []):
            extra()
        p.mfma(*items[i]["mf"])
        if i % grp == grp - 1:
            while issued < nitem and issued <= i + nbuf_ahead:
                issue(issued)
                issued += 1
        while vi < len(valu) and done < base + (tot - base) * (i + 1) / nitem:
            done += valu[vi][0]
            valu[vi][1]()
            vi += 1
    while vi < len(valu):
        valu[vi][1]()
        vi += 1


def softmax_p(p, t):
    S = SB + 32 * (t & 1)
    P = PB + 16 * (t & 1)
    L = []

    def A(f, c=1):
        L.append((c, f))

    A(lambda: p.v("v_max3_f32", vT0, S, S + 1, S + 2))
    A(lambda: p.v("v_max3_f32", vT1, S + 3, S + 4, S + 5))
    for i in range(6, 30, 4):
        A(lambda i=i: p.v("v_max3_f32", vT0, vT0, S + i, S + i + 1))
        A(lambda i=i: p.v("v_max3_f32", vT1, vT1, S + i + 2, S + i + 3))
    A(lambda: p.v("v_max3_f32", vT0, vT0, S + 30, S + 31))
    A(lambda: p.v("v_max_f32", vT0, vT0, vT1))
    A(lambda: p.v("v_mov_b32", vT1, vT0))
    A(lambda: p.perm_swap(vT0, vT1))
    if t == 0:
        A(lambda: p.v("v_max_f32", vM, vT0, vT1))
    else:
        A(lambda: p.v("v_max3_f32", vT0, vT0, vT1, vM))
        A(lambda: p.v("v_sub_f32", vT1, vM, vT0))
        A(lambda: p.v("v_mul_f32", vT1, f"s{sC}", vT1))
        A(lambda: p.trans("v_exp_f32", vAL, vT1), 2)
        A(lambda: p.v("v_mov_b32", vM, vT0))
    A(lambda: p.v("v_mul_f32", vMC, f"s{sC}", vM))
    first = True
    for g in range(4):
        b0 = S + 8 * g
        for i in range(8):
            A(lambda i=i, b0=b0: p.v("v_fma_f32", b0 + i, b0 + i, f"s{sC}", ("neg", vMC)))
        for i in range(8):
            A(lambda i=i, b0=b0: p.trans("v_exp_f32", b0 + i, b0 + i), 2)
        for i in range(0, 8, 2):
            if first:
                if t == 0:
                    A(lambda b0=b0: p.v("v_mov_b32", vL, b0))
                else:
                    A(lambda b0=b0: p.v("v_fma_f32", vL, vL, vAL, b0))
                A(lambda b0=b0: p.v("v_mov_b32", vT2, b0 + 1))
                first = False
            else:
                A(lambda i=i, b0=b0: p.v("v_add_f32", vL, vL, b0 + i))
                A(lambda i=i, b0=b0: p.v("v_add_f32", vT2, vT2, b0 + i + 1))
        for i in range(4):
            A(lambda i=i, g=g, b0=b0: p.v("v_cvt_pk_bf16_f32", P + 4 * g + i, b0 + 2 * i, b0 + 2 * i + 1))
    A(lambda: p.v("v_add_f32", vL, vL, vT2))
    return L


def rescale(p):
    return [(1, lambda i=i: p.v("v_mul_f32", ACC + i, vAL, ACC + i)) for i in range(64)]


def split_cost(L, frac):
    tot = sum(c for c, _ in L)
    acc = 0
    for k, (c, _) in enumerate(L):
        if acc >= tot * frac:
            return L[:k], L[k:]
        acc += c
    return L, []


def lane_parts(p):
    lane, r_, h_, aq = vU0, vU1, vU2, vU3
    p.v("v_mbcnt_lo_u32_b32", lane, "-1", "0")
    p.v("v_mbcnt_hi_u32_b32", lane, "-1", lane)
    p.v("v_lshrrev_b32", h_, I(5), lane)
    p.v("v_bfe_u32", r_, lane, I(2), I(2))
    p.v("v_bfe_u32", aq, lane, I(4), I(1))
    p.v("v_lshlrev_b32", aq, I(2), aq)
    p.v("v_and_b32", vT0, I(1), lane)
    p.v("v_lshlrev_b32", vT0, I(1), vT0)
    p.v("v_or_b32", aq, aq, vT0)
    p.v("v_bfe_u32", vT0, lane, I(1), I(1))
    p.v("v_or_b32", aq, aq, vT0)
    p.v("v_lshlrev_b32", aq, I(3), aq)


def setup_kv_addr(p):
    lane_parts(p)
    lane, r_, h_, aq = vU0, vU1, vU2, vU3
    p.v("v_lshlrev_b32", vT0, I(2), h_)
    p.v("v_add_u32", vT0, vT0, r_)
    p.v("v_lshlrev_b32", vT0, I(8), vT0)
    p.v("v_add_u32", vT0, vT0, aq)
    for dt in range(4):
        p.v("v_xor_b32", vT1, I(dt), r_)
        p.v("v_lshlrev_b32", vT1, I(6), vT1)
        p.v("v_add_u32", vV + dt, vT0, vT1)
    p.v("v_and_b32", vT0, I(15), lane)
    p.v("v_lshlrev_b32", vT1, I(3), h_)
    p.v("v_xor_b32", vT0, vT0, vT1)
    p.v("v_lshlrev_b32", vT0, I(4), vT0)
    p.v("v_and_b32", vT1, I(31), lane)
    p.v("v_lshlrev_b32", vT1, I(8), vT1)
    for ks in range(8):
        p.v("v_xor_b32", vK + ks, I(ks << 4), vT0)
        p.v("v_add_u32", vK + ks, vK + ks, vT1)


def setup_img_addr(p, xa, lane, t0, t1):
    p.v("v_and_b32", t0, I(15), lane)
    p.v("v_lshrrev_b32", t1, I(4), lane)
    p.v("v_xor_b32", t1, t1, t0)
    p.v("v_lshlrev_b32", t1, I(4), t1)
    p.v("v_lshlrev_b32", t0, I(10), t0)
    p.v("v_add_u32", t0, I(IMG), t0)
    for m in range(4):
        p.v("v_xor_b32", xa + m, I(m << 6), t1)
        p.v("v_add_u32", xa + m, xa + m, t0)


def setup_wo_addr(p, woa, lane, t0, t1):
    p.v("v_and_b32", t0, I(15), lane)
    p.v("v_lshlrev_b32", t0, I(4), t0)
    p.v("v_lshrrev_b32", t1, I(4), lane)
    p.v("v_lshlrev_b32", t1, I(13), t1)
    p.v("v_add_u32", woa, t0, t1)
    p.v("v_add_u32", woa + 1, I(4096), woa)


def stream_w(p, kbs, LBs, FRG, ACCb, XBb, xa, vm, load_ops, preloaded, tagp, stamp=False, bar_at=None):
    nblk = len(kbs)
    NB = len(LBs)

    def xread(n):
        kb = kbs[n]
        xb = XBb + 8 * (n & 1)
        p.ds_read("ds_read_b128", xb, 4, xa + (kb & 3), (kb >> 2) * 256)
        return p.ds_read("ds_read_b128", xb + 4, 4, xa + (kb & 3), (kb >> 2) * 256 + 16384)

    st = {"pi": 0}

    def perms_upto(lim):
        lim = min(lim, 32 * nblk)
        while st["pi"] < lim:
            pi = st["pi"]
            n, w = pi // 32, pi % 32
            if w == 0:
                vm.wait((tagp, n))
            j, pq = w // 4, w % 4
            c = j >> 1
            LB = LBs[n % NB]
            sel = sSEL1 if j & 1 else sSEL0
            p.v("v_perm_b32", FRG + 4 * j + pq, LB + 4 * (2 * pq + 1) + c, LB + 4 * (2 * pq) + c, f"s{sel}")
            st["pi"] += 1

    xm = {0: xread(0)}
    k = 0
    for n in range(nblk):
        if n == bar_at:
            p.barrier()
        elif stamp and DBG and p.ts is not None:
            p.stamp()
        if n + 1 < nblk:
            xm[n + 1] = xread(n + 1)
        loads = []
        nn = n + NB - 1
        if n >= 1 and preloaded <= nn < nblk:
            loads = load_ops(nn)
        for j in range(8):
            for half in range(2):
                perms_upto(2 * k + 6)
                if j == 0 and half == 0:
                    p.lgkm(p.lds_out - xm[n])
                a = ACCb + 8 * j + 4 * half
                p.mfma16(a, FRG + 4 * j, XBb + 8 * (n & 1) + 4 * half, None if n == 0 else a)
                k += 1
                if half == 0 and j < len(loads):
                    loads[j]()
        if loads:
            vm.tag((tagp, nn))


def finish(p, ACCb, keep, tmp, out, va, vb, lane, t0, cgreg):
    p.v("v_lshlrev_b32", t0, I(4), lane)
    p.s(f"s_lshl_b32 s{sT0}, s{sWAVE}, 13")
    p.v("v_add_u32", va, f"s{sT0}", t0)
    p.s(f"s_xor_b32 s{sT0}, s{sT0}, {4 << 13}")
    p.v("v_add_u32", vb, f"s{sT0}", t0)
    for j in range(8):
        p.ds_write128(va, ACCb + 8 * j + 4 * (1 - keep), COMB + j * 1024)
    p.v("v_and_b32", t0, I(15), lane)
    p.v("v_lshlrev_b32", t0, I(10), t0)
    p.v("v_lshrrev_b32", va, I(4), lane)
    p.v("v_lshlrev_b32", va, I(6), va)
    p.v("v_add_u32", va, va, t0)
    p.s(f"s_and_b32 s{sT0}, s{sWAVE}, 3")
    p.s(f"s_lshl_b32 s{sT0}, s{sT0}, 8")
    p.s(f"s_add_u32 s{sT0}, s{sT0}, {keep * 16384}")
    p.v("v_add_u32", va, f"s{sT0}", va)
    p.lgkm(0)
    p.barrier()
    marks = []
    for j in range(8):
        marks.append(p.ds_read("ds_read_b128", tmp + 4 * j, 4, vb, COMB + j * 1024))
    for j in range(8):
        p.lgkm(p.lds_out - marks[j])
        for r in range(4):
            a = ACCb + 8 * j + 4 * keep + r
            p.v("v_add_f32", a, a, tmp + 4 * j + r)
    for r in range(4):
        for jp in range(4):
            p.v("v_cvt_pk_bf16_f32", out + 4 * r + jp, ACCb + 16 * jp + 4 * keep + r, ACCb + 16 * jp + 8 + 4 * keep + r)
        p.vstore4(out + 4 * r, va, sWS, "0", r * 16, STMOD)


def gen_compute(p):
    p.label("L_compute")
    lane = vU0
    p.v("v_and_b32", lane, I(63), 0)
    vm = VM(p)
    p.s(f"s_lshl_b32 s{sT0}, s{sWAVE}, 13")
    p.s(f"s_and_b32 s{sT1}, s{sWAVE}, 1")
    p.s(f"s_lshl_b32 s{sT1}, s{sT1}, 3")
    for i in range(8):
        p.s(f"s_add_u32 s{sT2}, s{sT1}, {i}")
        p.v("v_xor_b32", vT0 + (i & 3), f"s{sT2}", lane)
        p.v("v_lshlrev_b32", vT0 + (i & 3), I(4), vT0 + (i & 3))
        if i % 4 == 0:
            p.s(f"s_add_u32 s{sOFF}, s{sT0}, {i*1024}")
            p.m0(f"s_add_u32 m0, s{sT0}, {IMG + i*1024}")
        p.dma(vT0 + (i & 3), sX, f"s{sOFF}", (i & 3) * 1024)
        vm.op()
    vm.tag("x")
    p.v("v_and_b32", vT0, I(15), lane)
    p.v("v_lshlrev_b32", vT0, I(4), vT0)
    p.v("v_lshrrev_b32", vT1, I(4), lane)
    p.v("v_lshlrev_b32", vT1, I(16), vT1)
    p.v("v_add_u32", vWQ, vT0, vT1)
    for i in range(1, 8):
        p.v("v_add_u32", vWQ + i, I(i * 8192), vWQ)
    p.s(f"s_lshl_b32 s{sPAR}, s{sWAVE}, 8")
    p.s(f"s_lshl_b32 s{sT1}, s{sHKV}, 10")
    p.s(f"s_add_u32 s{sT1}, s{sT1}, s{sPAR}")
    add64(p, sWQ, f"s{sT1}")
    p.s(f"s_sub_u32 s{sWQ+2}, s{sWQ+2}, s{sT1}")
    p.s(f"s_lshl_b32 s{sT1}, s{sHKV}, 19")
    p.s(f"s_add_u32 s{sT1}, s{sT1}, s{sPAR}")
    add64(p, sWO, f"s{sT1}")
    p.s(f"s_sub_u32 s{sWO+2}, s{sWO+2}, s{sT1}")

    def wq_ops(n):
        ops = []
        for i in range(8):
            def f(i=i, n=n):
                if i == 0:
                    p.s(f"s_mov_b32 s{sOFF}, {n*262144}")
                p.vload4(CLB[n % 3] + 4 * i, vWQ + i, sWQ, f"s{sOFF}", 0)
                vm.op()
            ops.append(f)
        return ops

    for n in range(3):
        for f in wq_ops(n):
            f()
        vm.tag(("wq", n))
    setup_img_addr(p, vXA, lane, vT0, vT1)
    p.s(f"s_mov_b32 s{sC}, {f32hex(C_SCALE)}")
    if DBG:
        p.s("s_memrealtime s[62:63]")
        p.ts = 0
        p.stamp()
    vm.wait("x")
    p.barrier()
    stream_w(p, list(range(16)), CLB, CFRG, ACC, XB, vXA, vm, wq_ops, 3, "wq", stamp=True, bar_at=BA_AT if USE_BA else None)
    setup_kv_addr(p)
    setup_wo_addr(p, vWOA, vU0, vT0, vT1)
    for r in range(4):
        for jp in range(4):
            for half in range(2):
                p.v("v_cvt_pk_bf16_f32", QB + 16 * half + 4 * r + jp, ACC + 16 * jp + 4 * half + r,
                    ACC + 16 * jp + 8 + 4 * half + r)
    for i in range(16):
        p.perm16_swap(QB + i, QB + 16 + i)

    cbs = list(range(NL, 16))

    def wo_ops(n):
        ops = []
        for i in range(8):
            def f(i=i, n=n):
                if i == 0:
                    p.s(f"s_mov_b32 s{sOFF}, {cbs[n]*32768}")
                p.vload4(CLB[n % 3] + 4 * i, vWOA + (i >> 2), sWO, f"s{sOFF}", (i & 3) * 1024)
                vm.op()
            ops.append(f)
        return ops

    carry = []
    for si, (kind, t) in enumerate(KVSEQ):
        p.barrier()
        if si in (4, 8, 12):
            op = "v_add_u32" if si != 8 else "v_subrev_u32"
            for r in list(range(vK, vK + 8)) + list(range(vV, vV + 4)):
                p.v(op, r, I(65536), r)
        pre_ld = []
        if si in (14, 15):
            for n in ((0, 1) if si == 14 else (2,)):
                ops = wo_ops(n)
                for f in ops[:-1]:
                    pre_ld.append((3, f))
                pre_ld.append((3, lambda f=ops[-1], n=n: (f(), vm.tag(("wo", n)))))
        base = (si % 4) * SLOT
        items = []
        fi = 0
        if kind == "K":
            S = SB + 32 * (t & 1)
            for ks in range(8):
                for kt in range(2):
                    f = FR + 4 * (fi % 8)
                    fi += 1
                    reads = [("ds_read_b128", f, 4, vK + ks, base + kt * 8192)]
                    c = None if ks == 0 else S + 16 * kt
                    items.append(dict(reads=reads, mf=(S + 16 * kt, f, QB + 4 * ks, c)))
            if t == 1:
                valu = softmax_p(p, 0)
            elif t >= 2:
                valu = rescale(p) + carry
            else:
                valu = []
            carry = []
            mfma_stream(p, items, valu, 8, grp=2, head=HEAD)
        else:
            P = PB + 16 * (t & 1)
            for ks in range(4):
                for dt in range(4):
                    f = FR + 4 * (fi % 8)
                    fi += 1
                    reads = [
                        ("ds_read_b64_tr_b16", f, 2, vV + dt, base + ks * 4096),
                        ("ds_read_b64_tr_b16", f + 2, 2, vV + dt, base + ks * 4096 + 2048),
                    ]
                    c = None if (t == 0 and ks == 0) else ACC + 16 * dt
                    items.append(dict(reads=reads, mf=(ACC + 16 * dt, f, P + 4 * ks, c)))
            if t == 7:
                items[0]["pre"] = [f for _, f in rescale(p)]
                valu = pre_ld
            elif t == 6:
                sm = softmax_p(p, 7)
                valu = []
                step = max(1, len(sm) // (len(pre_ld) + 1))
                for ii, e in enumerate(sm):
                    valu.append(e)
                    if ii % step == step - 1 and pre_ld:
                        valu.append(pre_ld.pop(0))
                valu += pre_ld
            else:
                valu, carry = split_cost(softmax_p(p, t + 1), SPLIT)
            mfma_stream(p, items, valu, 6, grp=2, head=HEAD)
        p.lgkm(0)
    p.v("v_mov_b32", vT0, vL)
    p.v("v_mov_b32", vT1, vL)
    p.perm_swap(vT0, vT1)
    p.v("v_add_f32", vT0, vT0, vT1)
    p.trans("v_rcp_f32", vT0, vT0)
    lane, h_ = vU0, vU2
    p.v("v_mbcnt_lo_u32_b32", lane, "-1", "0")
    p.v("v_mbcnt_hi_u32_b32", lane, "-1", lane)
    p.v("v_lshrrev_b32", h_, I(5), lane)
    p.v("v_and_b32", vT2, I(15), lane)
    p.v("v_xor_b32", vT2, vT2, h_)
    p.v("v_lshlrev_b32", vT2, I(4), vT2)
    p.v("v_and_b32", vT1, I(31), lane)
    p.v("v_lshlrev_b32", vT1, I(10), vT1)
    p.v("v_add_u32", vT1, I(IMG), vT1)
    p.v("v_add_u32", vT1, f"s{sPAR}", vT1)
    for kk in range(8):
        p.v("v_xor_b32", vK + kk, I(kk << 5), vT2)
        p.v("v_add_u32", vK + kk, vK + kk, vT1)
    for kk in range(8):
        for i in range(4 * kk, 4 * kk + 4):
            p.v("v_mul_f32", ACC + 2 * i, vT0, ACC + 2 * i)
            p.v("v_mul_f32", ACC + 2 * i + 1, vT0, ACC + 2 * i + 1)
            p.v("v_cvt_pk_bf16_f32", OB + i, ACC + 2 * i, ACC + 2 * i + 1)
        p.ds_write128(vK + kk, OB + 4 * kk, 0)
    p.lgkm(0)
    p.barrier()
    stream_w(p, cbs, CLB, CFRG, ACC, XB, vXA, vm, wo_ops, 3, "wo", stamp=True)
    finish(p, ACC, 0, CLB[0], CLB[1], vK, vK + 1, vU0, vT0, None)
    if DBG:
        p.stamp()
        p.vmcnt(0)
        p.stamp()
        print("nstamps", p.ts, file=sys.stderr)
        p.ts = None
        p.s("s_memrealtime s[60:61]")
        p.s("s_waitcnt lgkmcnt(0)")
        p.s("s_sub_u32 s60, s60, s62")
        p.raw("    v_writelane_b32 v0, s60, 63")
        p.s(f"s_cmp_lg_u32 s{sWAVE}, 0")
        p.s("s_cbranch_scc1 L_exit")
        p.s("s_memrealtime s[60:61]")
        p.s("s_waitcnt lgkmcnt(0)")
        p.s("s_mov_b32 s68, s18")
        p.s("s_and_b32 s69, s19, 0xffff")
        p.s("s_mov_b32 s70, 0x4000000")
        p.s("s_mov_b32 s71, 0x00020000")
        p.raw("    v_mov_b32 v2, s66")
        p.raw("    v_mov_b32 v3, s62")
        p.raw("    v_mov_b32 v4, s60")
        p.raw("    v_mov_b32 v5, 0")
        p.s("s_lshl_b32 s72, s2, 4")
        p.s("s_add_u32 s72, s72, 0x2000000")
        p.raw("    v_mov_b32 v6, 0")
        p.raw("    buffer_store_dwordx4 v[2:5], v6, s[68:71], s72 offen")
        p.s(f"s_cmp_lg_u32 s2, {DBG-1}")
        p.s("s_cbranch_scc1 L_exit")
        srd(p, 64, 16, 17, 256)
        p.v("v_mbcnt_lo_u32_b32", 1, "-1", "0")
        p.v("v_mbcnt_hi_u32_b32", 1, "-1", 1)
        p.v("v_lshlrev_b32", 1, I(2), 1)
        p.raw("    buffer_store_dword v0, v1, s[64:67], 0 offen")
    p.s("s_endpgm")


def gen_loader(p):
    p.label("L_kvload")
    vm = VM(p)
    L = 9
    p.v("v_and_b32", L, I(63), 0)
    p.v("v_lshrrev_b32", 11, I(4), L)
    p.v("v_and_b32", 12, I(15), L)
    p.v("v_lshlrev_b32", 13, I(8), 11)
    for j in range(4):
        p.v("v_add_u32", 14, I(4 * j), 11)
        p.v("v_xor_b32", 14, 14, 12)
        p.v("v_lshlrev_b32", 14, I(4), 14)
        p.v("v_add_u32", 1 + j, 14, 13)
    p.v("v_lshlrev_b32", 14, I(2), 11)
    p.v("v_xor_b32", 14, 14, 12)
    p.v("v_lshlrev_b32", 14, I(4), 14)
    p.v("v_add_u32", 5, 14, 13)
    p.s(f"s_add_u32 s{sROT}, s{sB}, s{sHKV}")
    p.s(f"s_and_b32 s{sT0}, s{sWAVE}, 3")
    p.s(f"s_lshl_b32 s{sPAR}, s{sT0}, 12")
    p.v("v_and_b32", 8, I(63), 0)
    p.v("v_lshlrev_b32", 9, I(4), 8)
    p.v("v_add_u32", 9, f"s{sPAR}", 9)
    p.v("v_add_u32", 10, I(65536), 9)
    add64(p, sK, f"s{sPAR}")
    p.s(f"s_sub_u32 s{sK+2}, s{sK+2}, s{sPAR}")
    add64(p, sV, f"s{sPAR}")
    p.s(f"s_sub_u32 s{sV+2}, s{sV+2}, s{sPAR}")
    if WARM:
        p.v("v_lshlrev_b32", 14, I(4), 8)
        p.s(f"s_lshl_b32 s{sT1}, s{sB}, 4")
        p.s(f"s_lshl_b32 s{sT2}, s{sT0}, 2")
        p.s(f"s_add_u32 s{sT1}, s{sT1}, s{sT2}")
        p.s(f"s_lshl_b32 s{sT2}, s{sT1}, 13")
        p.s(f"s_lshl_b32 s{sOFF}, s{sHKV}, 10")
        p.s(f"s_add_u32 s{sT2}, s{sT2}, s{sOFF}")
        for j in range(4):
            p.vload4(LLB[0] + 4 * j, 14, sWQ, f"s{sT2}", 0)
            vm.op()
            p.s(f"s_add_u32 s{sT2}, s{sT2}, 8192")
        p.s(f"s_lshl_b32 s{sT2}, s{sHKV}, 19")
        p.s(f"s_lshl_b32 s{sT1}, s{sT1}, 10")
        p.s(f"s_add_u32 s{sT2}, s{sT2}, s{sT1}")
        for j in range(4):
            p.vload4(LLB[0] + 16 + 4 * j, 14, sWO, f"s{sT2}", j * 1024)
            vm.op()
    p.s(f"s_lshl_b32 s{sT1}, s{sHKV}, 19")
    p.s(f"s_lshl_b32 s{sT2}, s{sT0}, 8")
    p.s(f"s_add_u32 s{sT1}, s{sT1}, s{sT2}")
    add64(p, sWO, f"s{sT1}")
    p.s(f"s_sub_u32 s{sWO+2}, s{sWO+2}, s{sT1}")
    setup_wo_addr(p, lWOA, 8, 14, 15)
    setup_img_addr(p, lXA, 8, 11, 15)

    def issue_tile(i, capu=None):
        kind, t = KVSEQ[i]
        p.s(f"s_add_u32 s{sOFF}, s{sROT}, {t}")
        p.s(f"s_and_b32 s{sOFF}, s{sOFF}, 7")
        p.s(f"s_lshl_b32 s{sOFF}, s{sOFF}, 14")
        if i < 8:
            p.m0(f"s_add_u32 m0, s{sPAR}, {i*SLOT}")
        for j in range(4):
            vo = 1 + j if kind == "K" else 5
            sr = sK if kind == "K" else sV
            if capu is not None:
                p.vmcnt(capu - 1)
            if i < 8:
                p.dma(vo, sr, f"s{sOFF}", j * 1024, KVMOD)
            else:
                p.vload4(LKV + 16 * (i - 8) + 4 * j, vo, sr, f"s{sOFF}", j * 1024, KVMOD)
            vm.op()
        vm.tag(("kv", i))

    lbs = list(range(NL))

    def wo_ops(n):
        ops = []
        for i in range(8):
            def f(i=i, n=n):
                if i == 0:
                    p.s(f"s_mov_b32 s{sOFF}, {lbs[n]*32768}")
                p.vload4(LLB[n % 4] + 4 * i, lWOA + (i >> 2), sWO, f"s{sOFF}", (i & 3) * 1024)
                vm.op()
            ops.append(f)
        return ops

    for i in range(NPRE):
        issue_tile(i)
    p.barrier()
    nxt = NPRE
    while nxt < NPRE + NTR:
        issue_tile(nxt, CAPU)
        nxt += 1
    if USE_BA:
        p.barrier()
    while nxt < min(16, NPRE + NTR + NB_A):
        issue_tile(nxt)
        nxt += 1
    vm.wait(("kv", 1))
    pf = {PF0: 0, PF0 + 1: 1, PF0 + 2: 2, 14: 3}
    for s in range(16):
        p.barrier()
        for _ in range(KVPS):
            if nxt < 16:
                issue_tile(nxt)
                nxt += 1
        i = s + 2
        if i < 16:
            vm.wait(("kv", i))
            if i >= 8:
                for j in range(4):
                    a = (i % 8) * SLOT + j * 1024
                    p.ds_write128(9 + a // 65536, LKV + 16 * (i - 8) + 4 * j, a % 65536)
                p.lgkm(0)
        if s in pf and pf[s] < NL:
            for f in wo_ops(pf[s]):
                f()
            vm.tag(("wo", pf[s]))
    p.barrier()
    stream_w(p, lbs, LLB, LFRG, LACC, LXB, lXA, vm, wo_ops, 4, "wo")
    finish(p, LACC, 1, LLB[0], LLB[1], 1, 2, 8, 3, None)
    p.s("s_endpgm")


def gen_main():
    p = Prog()
    p.raw(".text")
    p.raw(f".globl {NAME}_kernel")
    p.raw(".p2align 8")
    p.raw(f".type {NAME}_kernel,@function")
    p.label(f"{NAME}_kernel")
    p.s("s_cmp_ge_u32 s2, 256")
    p.s("s_cbranch_scc1 L_exit")
    p.s("s_load_dwordx16 s[4:19], s[0:1], 0")
    if DBG:
        p.s("s_memrealtime s[66:67]")
    p.s(f"s_and_b32 s{sHKV}, s2, 7")
    p.s(f"s_lshr_b32 s{sB}, s2, 3")
    p.v("v_lshrrev_b32", 1, I(6), 0)
    p.rfl(f"s{sWAVE}", 1)
    p.s(f"s_mov_b32 s{sSEL0}, 0x05040100")
    p.s(f"s_mov_b32 s{sSEL1}, 0x07060302")
    p.s("s_waitcnt lgkmcnt(0)")
    srd(p, sX, 4, 5, 32768)
    srd(p, sK, 6, 7, 131072)
    srd(p, sV, 8, 9, 131072)
    srd(p, sWQ, 10, 11, 4194304)
    srd(p, sWO, 12, 13, 4194304)
    srd(p, sWS, 18, 19, 32768)
    p.s(f"s_lshl_b32 s{sT0}, s{sB}, 15")
    add64(p, sX, f"s{sT0}")
    p.s(f"s_lshl_b32 s{sT0}, s2, 17")
    add64(p, sK, f"s{sT0}")
    add64(p, sV, f"s{sT0}")
    p.s(f"s_lshl_b32 s{sT0}, s{sHKV}, 5")
    p.s(f"s_add_u32 s{sT0}, s{sT0}, s{sB}")
    p.s(f"s_lshl_b32 s{sT0}, s{sT0}, 15")
    add64(p, sWS, f"s{sT0}")
    p.s(f"s_cmp_ge_u32 s{sWAVE}, 4")
    p.s("s_cbranch_scc1 L_kvload")
    gen_compute(p)
    gen_loader(p)
    p.label("L_exit")
    p.s("s_endpgm")
    return p


def gen_reduce():
    p = Prog()
    p.raw(".globl gqa_reduce_kernel")
    p.raw(".p2align 8")
    p.raw(".type gqa_reduce_kernel,@function")
    p.label("gqa_reduce_kernel")
    p.s("s_cmp_ge_u32 s2, 256")
    p.s("s_cbranch_scc1 L_rexit")
    p.s("s_load_dwordx2 s[4:5], s[0:1], 40")
    p.s("s_load_dwordx2 s[6:7], s[0:1], 56")
    p.s("s_lshl_b32 s3, s2, 12")
    p.v("v_and_b32", 1, I(255), 0)
    p.v("v_lshlrev_b32", 1, I(4), 1)
    p.v("v_add_u32", 1, "s3", 1)
    p.s("s_waitcnt lgkmcnt(0)")
    srd(p, 8, 4, 5, 1048576)
    srd(p, 12, 6, 7, 8388608)
    for hk in range(8):
        p.s(f"s_mov_b32 s{16+hk}, {hk*1048576}")
    for hk in range(8):
        p.vload4(8 + 4 * hk, 1, 12, f"s{16+hk}", 0)
    for hk in range(8):
        p.vmcnt(7 - hk)
        for e in range(4):
            src = 8 + 4 * hk + e
            if hk == 0:
                p.v("v_lshlrev_b32", 40 + 2 * e, I(16), src)
                p.v("v_and_b32", 41 + 2 * e, "0xffff0000", src)
            else:
                p.v("v_lshlrev_b32", 48, I(16), src)
                p.v("v_and_b32", 49, "0xffff0000", src)
                p.v("v_add_f32", 40 + 2 * e, 40 + 2 * e, 48)
                p.v("v_add_f32", 41 + 2 * e, 41 + 2 * e, 49)
    for e in range(4):
        p.v("v_cvt_pk_bf16_f32", 50 + e, 40 + 2 * e, 41 + 2 * e)
    p.vstore4(50, 1, 8, "0", 0)
    p.label("L_rexit")
    p.s("s_endpgm")
    return p


def kd(name, vgpr):
    return f""".amdhsa_kernel {name}
  .amdhsa_next_free_vgpr {vgpr}
  .amdhsa_next_free_sgpr 102
  .amdhsa_accum_offset {vgpr}
  .amdhsa_group_segment_fixed_size 0
  .amdhsa_kernarg_size 64
  .amdhsa_user_sgpr_count 2
  .amdhsa_user_sgpr_kernarg_segment_ptr 1
  .amdhsa_system_sgpr_workgroup_id_x 1
.end_amdhsa_kernel
"""


def main():
    m = gen_main()
    r = gen_reduce()
    txt = HEADER
    txt += f"; @launch kernel={NAME}_kernel grid=(256,1,1) block=(512,1,1) lds={LDS_BYTES}\n"
    txt += "; @launch kernel=gqa_reduce_kernel grid=(256,1,1) block=(256,1,1) lds=0\n"
    txt += '.amdgcn_target "amdgcn-amd-amdhsa--gfx950"\n'
    txt += "\n".join(m.lines) + "\n"
    txt += "\n".join(r.lines) + "\n"
    txt += '.section .rodata,"a"\n.p2align 6\n'
    txt += kd(f"{NAME}_kernel", 256)
    txt += ".p2align 6\n"
    txt += kd("gqa_reduce_kernel", 56)
    open(OUT, "w").write(txt)
    print("wrote", OUT, len(txt), "bytes", len(m.lines), "lines")


main()
```

```python
import sys, math

NAME = "standalone__gqa_block_cached__near_ridge"
import os
DBG = int(os.environ.get("DBG", "0"))
OUT = sys.argv[1] if len(sys.argv) > 1 else f"cdna_kernels/{NAME}.s"

HEADER = """; Kernarg layout for this problem (64 bytes, ptrs only, base s[0:1]):
"""


def R(a, n=1):
    return set(range(a, a + n))


def I(x):
    return str(x)


def vr(a, n):
    return f"v{a}" if n == 1 else f"v[{a}:{a+n-1}]"


class Ins:
    __slots__ = ("kind", "wr", "rd", "a", "b", "c", "d", "ws")

    def __init__(self, kind, wr=None, rd=None, a=None, b=None, c=None, d=None):
        self.kind = kind
        self.wr = wr or set()
        self.rd = rd or set()
        self.a, self.b, self.c, self.d = a, b, c, d
        self.ws = 1


VALUISH = ("valu", "trans", "perm", "rfl")


def need(p, c):
    n = 0
    if p.kind == "mfma":
        pd = p.wr
        if c.kind == "mfma":
            if (c.a | c.b) & pd:
                n = max(n, 12)
            if c.c & pd:
                n = max(n, 0 if c.c == pd else 10)
            elif c.wr & pd:
                n = max(n, 10)
        elif c.kind in VALUISH:
            if (c.rd | c.wr) & pd:
                n = max(n, 12)
            if c.wr & p.c:
                n = max(n, 7)
        elif c.kind in ("dsr", "dsw", "vml", "vms"):
            if (c.rd | c.wr) & pd:
                n = max(n, 12)
    elif p.kind in VALUISH:
        if c.kind == "mfma" and (c.a | c.b | c.c) & p.wr:
            n = max(n, 2)
        if p.kind == "trans" and c.kind != "mfma" and (c.rd & p.wr):
            n = max(n, 1)
        if c.kind == "perm" and (c.rd & p.wr):
            n = max(n, 2)
        if c.kind == "rfl" and (c.rd & p.wr):
            n = max(n, 1)
    elif p.kind in ("vms", "dsw"):
        if c.kind in VALUISH and (c.wr & p.rd):
            n = max(n, 2)
    elif p.kind == "m0w":
        if c.kind == "dma":
            n = max(n, 1)
    elif p.kind == "rfl_s":
        pass
    return n


class Prog:
    def __init__(self):
        self.lines = []
        self.hist = []
        self.lds_out = 0
        self.ts = None

    def raw(self, text):
        self.lines.append(text)

    def label(self, l):
        self.lines.append(f"{l}:")
        self.hist = []

    def _emit(self, text, ins):
        dist = 0
        req = 0
        for p in reversed(self.hist):
            r = need(p, ins) - dist
            req = max(req, r)
            dist += p.ws
            if dist > 16:
                break
        while req > 0:
            k = min(req, 8)
            self.lines.append(f"    s_nop {k-1}")
            nop = Ins("nop")
            nop.ws = k
            self.hist.append(nop)
            req -= k
        self.lines.append("    " + text)
        self.hist.append(ins)
        if len(self.hist) > 40:
            self.hist = self.hist[-40:]

    def s(self, text):
        self._emit(text, Ins("salu"))

    def m0(self, text):
        self._emit(text, Ins("m0w"))

    def nop(self, k):
        self.lines.append(f"    s_nop {k-1}")
        nop = Ins("nop")
        nop.ws = k
        self.hist.append(nop)

    def v(self, op, dst, *srcs, kind="valu", ndst=1):
        rd = set()
        ts = []
        for s_ in srcs:
            if isinstance(s_, int):
                rd.add(s_)
                ts.append(f"v{s_}")
            elif isinstance(s_, tuple):
                rd.add(s_[1])
                ts.append(f"-v{s_[1]}")
            else:
                ts.append(s_)
        self._emit(f"{op} {vr(dst, ndst)}, " + ", ".join(ts), Ins(kind, R(dst, ndst), rd))

    def trans(self, op, dst, src):
        self.v(op, dst, src, kind="trans")

    def perm_swap(self, a, b):
        self._emit(f"v_permlane32_swap_b32 v{a}, v{b}", Ins("perm", {a, b}, {a, b}))

    def rfl(self, sdst, src):
        self._emit(f"v_readfirstlane_b32 {sdst}, v{src}", Ins("rfl", set(), {src}))

    def mfma(self, d, a, b, c):
        cs = "0" if c is None else vr(c, 16)
        self._emit(
            f"v_mfma_f32_32x32x16_bf16 {vr(d,16)}, {vr(a,4)}, {vr(b,4)}, {cs}",
            Ins("mfma", R(d, 16), set(), R(a, 4), R(b, 4), set() if c is None else R(c, 16)),
        )

    def ds_read(self, op, dst, n, addr, off):
        assert 0 <= off < 65536, off
        self._emit(f"{op} {vr(dst,n)}, v{addr} offset:{off}", Ins("dsr", R(dst, n), {addr}))
        self.lds_out += 1
        return self.lds_out

    def ds_write128(self, addr, data, off):
        assert 0 <= off < 65536
        self._emit(f"ds_write_b128 v{addr}, {vr(data,4)} offset:{off}", Ins("dsw", set(), {addr} | R(data, 4)))
        self.lds_out += 1

    def lgkm(self, n):
        self._emit(f"s_waitcnt lgkmcnt({min(n,15)})", Ins("wait"))

    def vmcnt(self, n):
        assert n <= 63
        self._emit(f"s_waitcnt vmcnt({n})", Ins("wait"))

    def barrier(self):
        self._emit("s_barrier", Ins("wait"))
        if DBG and self.ts is not None:
            self.stamp()

    def stamp(self):
        self._emit("s_memtime s[60:61]", Ins("salu"))
        self._emit("s_waitcnt lgkmcnt(0)", Ins("wait"))
        self._emit(f"v_writelane_b32 v0, s60, {self.ts}", Ins("valu", {0}, set()))
        self.ts += 1

    def vload4(self, dst, voff, srd, soff, off, mod=""):
        assert 0 <= off < 4096
        self._emit(
            f"buffer_load_dwordx4 {vr(dst,4)}, v{voff}, s[{srd}:{srd+3}], {soff} offen offset:{off}{mod}",
            Ins("vml", R(dst, 4), {voff}),
        )

    def vstore4(self, data, voff, srd, soff, off, mod=""):
        assert 0 <= off < 4096
        self._emit(
            f"buffer_store_dwordx4 {vr(data,4)}, v{voff}, s[{srd}:{srd+3}], {soff} offen offset:{off}{mod}",
            Ins("vms", set(), {voff} | R(data, 4)),
        )

    def dma(self, voff, srd, soff, off, mod=""):
        assert 0 <= off < 4096
        self._emit(
            f"buffer_load_dwordx4 v{voff}, s[{srd}:{srd+3}], {soff} offen offset:{off}{mod} lds",
            Ins("dma", set(), {voff}),
        )

    def mfma16(self, d, a, b, c):
        cs = "0" if c is None else vr(c, 4)
        self._emit(
            f"v_mfma_f32_16x16x32_bf16 {vr(d,4)}, {vr(a,4)}, {vr(b,4)}, {cs}",
            Ins("mfma", R(d, 4), set(), R(a, 4), R(b, 4), set() if c is None else R(c, 4)),
        )

    def perm16_swap(self, a, b):
        self._emit(f"v_permlane16_swap_b32 v{a}, v{b}", Ins("perm", {a, b}, {a, b}))


SLOT = 16384
NKV = 8
IMG = 8 * SLOT
COMB = 0
LDS_BYTES = 10 * SLOT
KVSEQ = [("K", 0), ("K", 1)]
for t in range(2, 8):
    KVSEQ += [("V", t - 2), ("K", t)]
KVSEQ += [("V", 6), ("V", 7)]
assert len(KVSEQ) == 16

sB, sHKV, sWAVE = 20, 21, 22
sX, sK, sV, sWQ, sWO, sWS = 24, 28, 32, 36, 40, 44
sOFF, sPAR, sC, sT0, sT1, sT2 = 48, 49, 50, 51, 52, 53
sSEL0, sSEL1 = 54, 55
sROT = 58

vK = 1
vWQ = 1
vV = 9
vXA = 13
vWOA = 17
vSO = 19
vM, vL, vAL, vMC, vT0, vT1, vT2, vT3 = 20, 21, 22, 23, 24, 25, 26, 27
vU0, vU1, vU2, vU3 = 28, 29, 30, 31
ACC = 32
FR = 96
XB = 96
OB = 96
CLB = [128, 160, 192]
CFRG = 224
QB = 128
SB = 160
PB = 224

LLB = [16, 48, 80, 224]
LXB = 112
LKV = 128
LACC = 128
LFRG = 192
lXA = 12
lWOA = 6

C_SCALE = (128.0 ** -0.5) * math.log2(math.e)

SPLIT = float(os.environ.get("SPLIT", "0.64"))
HEAD = int(os.environ.get("HEAD", "30"))
WARM = int(os.environ.get("WARM", "1"))
KVMOD = os.environ.get("KVMOD", " nt")
STMOD = os.environ.get("STMOD", "")
CAP = int(os.environ.get("CAP", "12"))
NA_T = int(os.environ.get("NA_T", "9"))
NL = int(os.environ.get("NL", "7"))
PF0 = int(os.environ.get("PF0", "10"))
NPRE = int(os.environ.get("NPRE", "1"))
BA_AT = int(os.environ.get("BA_AT", "13"))
NB_A = int(os.environ.get("NB_A", "4"))
KVPS = int(os.environ.get("KVPS", "1"))
NTR = int(os.environ.get("NTR", "0"))
CAPU = int(os.environ.get("CAPU", "2"))
USE_BA = int(os.environ.get("USE_BA", "1"))
FUSE = int(os.environ.get("FUSE", "2"))
if DBG:
    FUSE = 0
sOUT, sDB = 76, 80
LIN = FUSE != 0
FUSE = FUSE == 1
TDBG = int(os.environ.get("TDBG", "0"))


def f32hex(x):
    import struct

    return "0x%08x" % struct.unpack("<I", struct.pack("<f", x))[0]


def srd(p, dst, lo, hi, nrec):
    p.s(f"s_mov_b32 s{dst}, s{lo}")
    p.s(f"s_and_b32 s{dst+1}, s{hi}, 0xffff")
    p.s(f"s_mov_b32 s{dst+2}, {nrec}")
    p.s(f"s_mov_b32 s{dst+3}, 0x00020000")


def add64(p, reg, sval):
    p.s(f"s_add_u32 s{reg}, s{reg}, {sval}")
    p.s(f"s_addc_u32 s{reg+1}, s{reg+1}, 0")


class VM:
    def __init__(self, p):
        self.p = p
        self.n = 0
        self.tags = {}

    def op(self, k=1):
        self.n += k

    def tag(self, t):
        self.tags[t] = self.n

    def wait(self, t):
        self.p.vmcnt(min(63, self.n - self.tags[t]))


def mfma_stream(p, items, valu, nbuf_ahead, grp=2, head=0):
    nitem = len(items)
    marks = [None] * nitem
    issued = 0

    def issue(i):
        last = None
        for (op, dst, n, addr, off) in items[i]["reads"]:
            last = p.ds_read(op, dst, n, addr, off)
        marks[i] = last

    while issued < min(nbuf_ahead, nitem):
        issue(issued)
        issued += 1
    tot = sum(c for c, _ in valu)
    vi = 0
    done = 0
    while vi < len(valu) and done < head:
        done += valu[vi][0]
        valu[vi][1]()
        vi += 1
    base = done
    for i in range(nitem):
        if i % grp == 0:
            j = min(i + grp, nitem) - 1
            assert marks[j] is not None
            p.lgkm(p.lds_out - marks[j])
        for extra in items[i].get("pre", []):
            extra()
        p.mfma(*items[i]["mf"])
        if i % grp == grp - 1:
            while issued < nitem and issued <= i + nbuf_ahead:
                issue(issued)
                issued += 1
        while vi < len(valu) and done < base + (tot - base) * (i + 1) / nitem:
            done += valu[vi][0]
            valu[vi][1]()
            vi += 1
    while vi < len(valu):
        valu[vi][1]()
        vi += 1


def softmax_p(p, t):
    S = SB + 32 * (t & 1)
    P = PB + 16 * (t & 1)
    L = []

    def A(f, c=1):
        L.append((c, f))

    A(lambda: p.v("v_max3_f32", vT0, S, S + 1, S + 2))
    A(lambda: p.v("v_max3_f32", vT1, S + 3, S + 4, S + 5))
    for i in range(6, 30, 4):
        A(lambda i=i: p.v("v_max3_f32", vT0, vT0, S + i, S + i + 1))
        A(lambda i=i: p.v("v_max3_f32", vT1, vT1, S + i + 2, S + i + 3))
    A(lambda: p.v("v_max3_f32", vT0, vT0, S + 30, S + 31))
    A(lambda: p.v("v_max_f32", vT0, vT0, vT1))
    A(lambda: p.v("v_mov_b32", vT1, vT0))
    A(lambda: p.perm_swap(vT0, vT1))
    if t == 0:
        A(lambda: p.v("v_max_f32", vM, vT0, vT1))
    else:
        A(lambda: p.v("v_max3_f32", vT0, vT0, vT1, vM))
        A(lambda: p.v("v_sub_f32", vT1, vM, vT0))
        A(lambda: p.v("v_mul_f32", vT1, f"s{sC}", vT1))
        A(lambda: p.trans("v_exp_f32", vAL, vT1), 2)
        A(lambda: p.v("v_mov_b32", vM, vT0))
    A(lambda: p.v("v_mul_f32", vMC, f"s{sC}", vM))
    first = True
    for g in range(4):
        b0 = S + 8 * g
        for i in range(8):
            A(lambda i=i, b0=b0: p.v("v_fma_f32", b0 + i, b0 + i, f"s{sC}", ("neg", vMC)))
        for i in range(8):
            A(lambda i=i, b0=b0: p.trans("v_exp_f32", b0 + i, b0 + i), 2)
        for i in range(0, 8, 2):
            if first:
                if t == 0:
                    A(lambda b0=b0: p.v("v_mov_b32", vL, b0))
                else:
                    A(lambda b0=b0: p.v("v_fma_f32", vL, vL, vAL, b0))
                A(lambda b0=b0: p.v("v_mov_b32", vT2, b0 + 1))
                first = False
            else:
                A(lambda i=i, b0=b0: p.v("v_add_f32", vL, vL, b0 + i))
                A(lambda i=i, b0=b0: p.v("v_add_f32", vT2, vT2, b0 + i + 1))
        for i in range(4):
            A(lambda i=i, g=g, b0=b0: p.v("v_cvt_pk_bf16_f32", P + 4 * g + i, b0 + 2 * i, b0 + 2 * i + 1))
    A(lambda: p.v("v_add_f32", vL, vL, vT2))
    return L


def rescale(p):
    return [(1, lambda i=i: p.v("v_mul_f32", ACC + i, vAL, ACC + i)) for i in range(64)]


def split_cost(L, frac):
    tot = sum(c for c, _ in L)
    acc = 0
    for k, (c, _) in enumerate(L):
        if acc >= tot * frac:
            return L[:k], L[k:]
        acc += c
    return L, []


def lane_parts(p):
    lane, r_, h_, aq = vU0, vU1, vU2, vU3
    p.v("v_mbcnt_lo_u32_b32", lane, "-1", "0")
    p.v("v_mbcnt_hi_u32_b32", lane, "-1", lane)
    p.v("v_lshrrev_b32", h_, I(5), lane)
    p.v("v_bfe_u32", r_, lane, I(2), I(2))
    p.v("v_bfe_u32", aq, lane, I(4), I(1))
    p.v("v_lshlrev_b32", aq, I(2), aq)
    p.v("v_and_b32", vT0, I(1), lane)
    p.v("v_lshlrev_b32", vT0, I(1), vT0)
    p.v("v_or_b32", aq, aq, vT0)
    p.v("v_bfe_u32", vT0, lane, I(1), I(1))
    p.v("v_or_b32", aq, aq, vT0)
    p.v("v_lshlrev_b32", aq, I(3), aq)


def setup_kv_addr(p):
    lane_parts(p)
    lane, r_, h_, aq = vU0, vU1, vU2, vU3
    p.v("v_lshlrev_b32", vT0, I(2), h_)
    p.v("v_add_u32", vT0, vT0, r_)
    p.v("v_lshlrev_b32", vT0, I(8), vT0)
    p.v("v_add_u32", vT0, vT0, aq)
    for dt in range(4):
        p.v("v_xor_b32", vT1, I(dt), r_)
        p.v("v_lshlrev_b32", vT1, I(6), vT1)
        p.v("v_add_u32", vV + dt, vT0, vT1)
    p.v("v_and_b32", vT0, I(15), lane)
    p.v("v_lshlrev_b32", vT1, I(3), h_)
    p.v("v_xor_b32", vT0, vT0, vT1)
    p.v("v_lshlrev_b32", vT0, I(4), vT0)
    p.v("v_and_b32", vT1, I(31), lane)
    p.v("v_lshlrev_b32", vT1, I(8), vT1)
    for ks in range(8):
        p.v("v_xor_b32", vK + ks, I(ks << 4), vT0)
        p.v("v_add_u32", vK + ks, vK + ks, vT1)


def setup_img_addr(p, xa, lane, t0, t1):
    p.v("v_and_b32", t0, I(15), lane)
    p.v("v_lshrrev_b32", t1, I(4), lane)
    p.v("v_xor_b32", t1, t1, t0)
    p.v("v_lshlrev_b32", t1, I(4), t1)
    p.v("v_lshlrev_b32", t0, I(10), t0)
    p.v("v_add_u32", t0, I(IMG), t0)
    for m in range(4):
        p.v("v_xor_b32", xa + m, I(m << 6), t1)
        p.v("v_add_u32", xa + m, xa + m, t0)


def setup_wo_addr(p, woa, lane, t0, t1):
    p.v("v_and_b32", t0, I(15), lane)
    p.v("v_lshlrev_b32", t0, I(4), t0)
    p.v("v_lshrrev_b32", t1, I(4), lane)
    p.v("v_lshlrev_b32", t1, I(13), t1)
    p.v("v_add_u32", woa, t0, t1)
    p.v("v_add_u32", woa + 1, I(4096), woa)


def stream_w(p, kbs, LBs, FRG, ACCb, XBb, xa, vm, load_ops, preloaded, tagp, stamp=False, bar_at=None):
    nblk = len(kbs)
    NB = len(LBs)

    def xread(n):
        kb = kbs[n]
        xb = XBb + 8 * (n & 1)
        p.ds_read("ds_read_b128", xb, 4, xa + (kb & 3), (kb >> 2) * 256)
        return p.ds_read("ds_read_b128", xb + 4, 4, xa + (kb & 3), (kb >> 2) * 256 + 16384)

    st = {"pi": 0}

    def perms_upto(lim):
        lim = min(lim, 32 * nblk)
        while st["pi"] < lim:
            pi = st["pi"]
            n, w = pi // 32, pi % 32
            if w == 0:
                vm.wait((tagp, n))
            j, pq = w // 4, w % 4
            c = j >> 1
            LB = LBs[n % NB]
            sel = sSEL1 if j & 1 else sSEL0
            p.v("v_perm_b32", FRG + 4 * j + pq, LB + 4 * (2 * pq + 1) + c, LB + 4 * (2 * pq) + c, f"s{sel}")
            st["pi"] += 1

    xm = {0: xread(0)}
    k = 0
    for n in range(nblk):
        if n == bar_at:
            p.barrier()
        elif stamp and DBG and p.ts is not None:
            p.stamp()
        if n + 1 < nblk:
            xm[n + 1] = xread(n + 1)
        loads = []
        nn = n + NB - 1
        if n >= 1 and preloaded <= nn < nblk:
            loads = load_ops(nn)
        for j in range(8):
            for half in range(2):
                perms_upto(2 * k + 6)
                if j == 0 and half == 0:
                    p.lgkm(p.lds_out - xm[n])
                a = ACCb + 8 * j + 4 * half
                p.mfma16(a, FRG + 4 * j, XBb + 8 * (n & 1) + 4 * half, None if n == 0 else a)
                k += 1
                if half == 0 and j < len(loads):
                    loads[j]()
        if loads:
            vm.tag((tagp, nn))


def finish(p, ACCb, keep, tmp, out, va, vb, lane, t0, cgreg):
    p.v("v_lshlrev_b32", t0, I(4), lane)
    p.s(f"s_lshl_b32 s{sT0}, s{sWAVE}, 13")
    p.v("v_add_u32", va, f"s{sT0}", t0)
    p.s(f"s_xor_b32 s{sT0}, s{sT0}, {4 << 13}")
    p.v("v_add_u32", vb, f"s{sT0}", t0)
    for j in range(8):
        p.ds_write128(va, ACCb + 8 * j + 4 * (1 - keep), COMB + j * 1024)
    if LIN:
        p.s(f"s_lshl_b32 s{sT0}, s{sWAVE}, 12")
        p.v("v_add_u32", va, f"s{sT0}", t0)
        p.s(f"s_lshl_b32 s{sT1}, s{sHKV}, 15")
    else:
        p.v("v_and_b32", t0, I(15), lane)
        p.v("v_lshlrev_b32", t0, I(10), t0)
        p.v("v_lshrrev_b32", va, I(4), lane)
        p.v("v_lshlrev_b32", va, I(6), va)
        p.v("v_add_u32", va, va, t0)
        p.s(f"s_and_b32 s{sT0}, s{sWAVE}, 3")
        p.s(f"s_lshl_b32 s{sT0}, s{sT0}, 8")
        p.s(f"s_add_u32 s{sT0}, s{sT0}, {keep * 16384}")
        p.v("v_add_u32", va, f"s{sT0}", va)
    p.lgkm(0)
    p.barrier()
    marks = []
    for j in range(8):
        marks.append(p.ds_read("ds_read_b128", tmp + 4 * j, 4, vb, COMB + j * 1024))
    for j in range(8):
        p.lgkm(p.lds_out - marks[j])
        for r in range(4):
            a = ACCb + 8 * j + 4 * keep + r
            p.v("v_add_f32", a, a, tmp + 4 * j + r)
    for r in range(4):
        for jp in range(4):
            p.v("v_cvt_pk_bf16_f32", out + 4 * r + jp, ACCb + 16 * jp + 4 * keep + r, ACCb + 16 * jp + 8 + 4 * keep + r)
        if LIN:
            p.vstore4(out + 4 * r, va, sWS, f"s{sT1}", r * 1024, " sc1" if FUSE else STMOD)
        else:
            p.vstore4(out + 4 * r, va, sWS, "0", r * 16, STMOD)


def gen_tail(p):
    p.label("L_tail")

    def ts(i):
        if TDBG:
            p.s(f"s_memrealtime s[{84+2*i}:{85+2*i}]")
            p.s("s_waitcnt lgkmcnt(0)")

    def dump():
        if not TDBG:
            return
        p.s("s_mov_b64 exec, 1")
        p.s("s_mov_b32 s68, s18")
        p.s("s_and_b32 s69, s19, 0xffff")
        p.s("s_mov_b32 s70, 0x4000000")
        p.s("s_mov_b32 s71, 0x00020000")
        p.s("s_lshl_b32 s72, s2, 5")
        p.s("s_add_u32 s72, s72, 0x2000000")
        p.raw("    v_mov_b32 v8, s66")
        for i in range(1, 8):
            p.raw(f"    v_mov_b32 v{8+i}, s{84+2*i}")
        p.raw("    v_mov_b32 v7, 0")
        p.raw("    buffer_store_dwordx4 v[8:11], v7, s[68:71], s72 offen")
        p.raw("    buffer_store_dwordx4 v[12:15], v7, s[68:71], s72 offen offset:16")

    ts(1)
    if TDBG:
        p.s("s_mov_b32 s96, 0")
        p.s("s_mov_b32 s98, 0")
    srd(p, sOUT, 14, 15, 32768)
    p.s(f"s_lshl_b32 s{sT0}, s{sB}, 15")
    add64(p, sOUT, f"s{sT0}")
    srd(p, sDB, 16, 17, 128)
    p.s(f"s_lshl_b32 s{sT2}, s{sB}, 2")
    p.v("v_mbcnt_lo_u32_b32", 5, "-1", "0")
    p.v("v_mbcnt_hi_u32_b32", 5, "-1", 5)
    p.v("v_and_b32", 6, I(15), 5)
    p.v("v_lshlrev_b32", 6, I(10), 6)
    p.v("v_lshrrev_b32", 4, I(4), 5)
    p.v("v_lshlrev_b32", 4, I(6), 4)
    p.v("v_add_u32", 4, 4, 6)
    p.s(f"s_and_b32 s{sT0}, s{sWAVE}, 3")
    p.s(f"s_lshl_b32 s{sT0}, s{sT0}, 8")
    p.s(f"s_lshr_b32 s{sT1}, s{sWAVE}, 2")
    p.s(f"s_lshl_b32 s{sT1}, s{sT1}, 14")
    p.s(f"s_add_u32 s{sT0}, s{sT0}, s{sT1}")
    p.v("v_add_u32", 4, f"s{sT0}", 4)
    p.v("v_mov_b32", 2, I(1))
    p.v("v_mov_b32", 3, I(0))
    p.vmcnt(0)
    ts(2)
    p.barrier()
    ts(3)
    p.s(f"s_cmp_lg_u32 s{sWAVE}, 0")
    p.s("s_cbranch_scc1 L_t1")
    p.s("s_mov_b64 exec, 1")
    p._emit(f"buffer_atomic_add v2, v3, s[{sDB}:{sDB+3}], s{sT2} offen sc0 sc1", Ins("vml", {2}, {2, 3}))
    p.vmcnt(0)
    ts(4)
    p._emit("ds_write_b32 v3, v2", Ins("dsw", set(), {2, 3}))
    p.s("s_waitcnt lgkmcnt(0)")
    p.s("s_mov_b64 exec, -1")
    p.label("L_t1")
    p.barrier()
    p._emit("ds_read_b32 v2, v3", Ins("dsr", {2}, {3}))
    p.s("s_waitcnt lgkmcnt(0)")
    p.rfl(f"s{sT0}", 2)
    ts(5)
    p.s(f"s_cmp_lg_u32 s{sT0}, 7")
    p.s("s_cbranch_scc1 L_t2" if TDBG else "s_cbranch_scc1 L_exit")
    for j in range(8):
        p.s(f"s_mov_b32 s{sOFF}, {j*32768}")
        for r in range(4):
            p.vload4(128 + 16 * j + 4 * r, 1, sWS, f"s{sOFF}", r * 1024, " sc1")
    k = 0
    for j in range(8):
        for r in range(4):
            p.vmcnt(31 - (4 * j + r))
            if j == 7 and r == 3:
                ts(6)
            for e in range(4):
                src = 128 + 16 * j + 4 * r + e
                a = 32 + 2 * (4 * r + e)
                if j == 0:
                    p.v("v_lshlrev_b32", a, I(16), src)
                    p.v("v_and_b32", a + 1, "0xffff0000", src)
                else:
                    t = 64 + 2 * (k & 3)
                    k += 1
                    p.v("v_lshlrev_b32", t, I(16), src)
                    p.v("v_and_b32", t + 1, "0xffff0000", src)
                    p._emit(f"v_pk_add_f32 v[{a}:{a+1}], v[{a}:{a+1}], v[{t}:{t+1}]",
                            Ins("valu", {a, a + 1}, {a, a + 1, t, t + 1}))
                if j == 7:
                    p.v("v_cvt_pk_bf16_f32", 96 + 4 * r + e, a, a + 1)
            if j == 7:
                p.vstore4(96 + 4 * r, 4, sOUT, "0", r * 16)
    p.s(f"s_cmp_lg_u32 s{sWAVE}, 0")
    p.s("s_cbranch_scc1 L_exit")
    p.s("s_mov_b64 exec, 1")
    p._emit(f"buffer_store_dword v3, v3, s[{sDB}:{sDB+3}], s{sT2} offen sc1", Ins("vms", set(), {3}))
    if TDBG:
        p.vmcnt(0)
        ts(7)
        p.label("L_t2")
        p.s(f"s_cmp_lg_u32 s{sWAVE}, 0")
        p.s("s_cbranch_scc1 L_exit")
        dump()
    p.s("s_endpgm")


def gen_compute(p):
    p.label("L_compute")
    lane = vU0
    p.v("v_and_b32", lane, I(63), 0)
    vm = VM(p)
    p.s(f"s_lshl_b32 s{sT0}, s{sWAVE}, 13")
    p.s(f"s_and_b32 s{sT1}, s{sWAVE}, 1")
    p.s(f"s_lshl_b32 s{sT1}, s{sT1}, 3")
    for i in range(8):
        p.s(f"s_add_u32 s{sT2}, s{sT1}, {i}")
        p.v("v_xor_b32", vT0 + (i & 3), f"s{sT2}", lane)
        p.v("v_lshlrev_b32", vT0 + (i & 3), I(4), vT0 + (i & 3))
        if i % 4 == 0:
            p.s(f"s_add_u32 s{sOFF}, s{sT0}, {i*1024}")
            p.m0(f"s_add_u32 m0, s{sT0}, {IMG + i*1024}")
        p.dma(vT0 + (i & 3), sX, f"s{sOFF}", (i & 3) * 1024)
        vm.op()
    vm.tag("x")
    p.v("v_and_b32", vT0, I(15), lane)
    p.v("v_lshlrev_b32", vT0, I(4), vT0)
    p.v("v_lshrrev_b32", vT1, I(4), lane)
    p.v("v_lshlrev_b32", vT1, I(16), vT1)
    p.v("v_add_u32", vWQ, vT0, vT1)
    for i in range(1, 8):
        p.v("v_add_u32", vWQ + i, I(i * 8192), vWQ)
    p.s(f"s_lshl_b32 s{sPAR}, s{sWAVE}, 8")
    p.s(f"s_lshl_b32 s{sT1}, s{sHKV}, 10")
    p.s(f"s_add_u32 s{sT1}, s{sT1}, s{sPAR}")
    add64(p, sWQ, f"s{sT1}")
    p.s(f"s_sub_u32 s{sWQ+2}, s{sWQ+2}, s{sT1}")
    p.s(f"s_lshl_b32 s{sT1}, s{sHKV}, 19")
    p.s(f"s_add_u32 s{sT1}, s{sT1}, s{sPAR}")
    add64(p, sWO, f"s{sT1}")
    p.s(f"s_sub_u32 s{sWO+2}, s{sWO+2}, s{sT1}")

    def wq_ops(n):
        ops = []
        for i in range(8):
            def f(i=i, n=n):
                if i == 0:
                    p.s(f"s_mov_b32 s{sOFF}, {n*262144}")
                p.vload4(CLB[n % 3] + 4 * i, vWQ + i, sWQ, f"s{sOFF}", 0)
                vm.op()
            ops.append(f)
        return ops

    for n in range(3):
        for f in wq_ops(n):
            f()
        vm.tag(("wq", n))
    setup_img_addr(p, vXA, lane, vT0, vT1)
    p.s(f"s_mov_b32 s{sC}, {f32hex(C_SCALE)}")
    if DBG:
        p.s("s_memrealtime s[62:63]")
        p.ts = 0
        p.stamp()
    vm.wait("x")
    p.barrier()
    stream_w(p, list(range(16)), CLB, CFRG, ACC, XB, vXA, vm, wq_ops, 3, "wq", stamp=True, bar_at=BA_AT if USE_BA else None)
    setup_kv_addr(p)
    setup_wo_addr(p, vWOA, vU0, vT0, vT1)
    for r in range(4):
        for jp in range(4):
            for half in range(2):
                p.v("v_cvt_pk_bf16_f32", QB + 16 * half + 4 * r + jp, ACC + 16 * jp + 4 * half + r,
                    ACC + 16 * jp + 8 + 4 * half + r)
    for i in range(16):
        p.perm16_swap(QB + i, QB + 16 + i)

    cbs = list(range(NL, 16))

    def wo_ops(n):
        ops = []
        for i in range(8):
            def f(i=i, n=n):
                if i == 0:
                    p.s(f"s_mov_b32 s{sOFF}, {cbs[n]*32768}")
                p.vload4(CLB[n % 3] + 4 * i, vWOA + (i >> 2), sWO, f"s{sOFF}", (i & 3) * 1024)
                vm.op()
            ops.append(f)
        return ops

    carry = []
    for si, (kind, t) in enumerate(KVSEQ):
        p.barrier()
        if si in (4, 8, 12):
            op = "v_add_u32" if si != 8 else "v_subrev_u32"
            for r in list(range(vK, vK + 8)) + list(range(vV, vV + 4)):
                p.v(op, r, I(65536), r)
        pre_ld = []
        if si in (14, 15):
            for n in ((0, 1) if si == 14 else (2,)):
                ops = wo_ops(n)
                for f in ops[:-1]:
                    pre_ld.append((3, f))
                pre_ld.append((3, lambda f=ops[-1], n=n: (f(), vm.tag(("wo", n)))))
        base = (si % 4) * SLOT
        items = []
        fi = 0
        if kind == "K":
            S = SB + 32 * (t & 1)
            for ks in range(8):
                for kt in range(2):
                    f = FR + 4 * (fi % 8)
                    fi += 1
                    reads = [("ds_read_b128", f, 4, vK + ks, base + kt * 8192)]
                    c = None if ks == 0 else S + 16 * kt
                    items.append(dict(reads=reads, mf=(S + 16 * kt, f, QB + 4 * ks, c)))
            if t == 1:
                valu = softmax_p(p, 0)
            elif t >= 2:
                valu = rescale(p) + carry
            else:
                valu = []
            carry = []
            mfma_stream(p, items, valu, 8, grp=2, head=HEAD)
        else:
            P = PB + 16 * (t & 1)
            for ks in range(4):
                for dt in range(4):
                    f = FR + 4 * (fi % 8)
                    fi += 1
                    reads = [
                        ("ds_read_b64_tr_b16", f, 2, vV + dt, base + ks * 4096),
                        ("ds_read_b64_tr_b16", f + 2, 2, vV + dt, base + ks * 4096 + 2048),
                    ]
                    c = None if (t == 0 and ks == 0) else ACC + 16 * dt
                    items.append(dict(reads=reads, mf=(ACC + 16 * dt, f, P + 4 * ks, c)))
            if t == 7:
                items[0]["pre"] = [f for _, f in rescale(p)]
                valu = pre_ld
            elif t == 6:
                sm = softmax_p(p, 7)
                valu = []
                step = max(1, len(sm) // (len(pre_ld) + 1))
                for ii, e in enumerate(sm):
                    valu.append(e)
                    if ii % step == step - 1 and pre_ld:
                        valu.append(pre_ld.pop(0))
                valu += pre_ld
            else:
                valu, carry = split_cost(softmax_p(p, t + 1), SPLIT)
            mfma_stream(p, items, valu, 6, grp=2, head=HEAD)
        p.lgkm(0)
    p.v("v_mov_b32", vT0, vL)
    p.v("v_mov_b32", vT1, vL)
    p.perm_swap(vT0, vT1)
    p.v("v_add_f32", vT0, vT0, vT1)
    p.trans("v_rcp_f32", vT0, vT0)
    lane, h_ = vU0, vU2
    p.v("v_mbcnt_lo_u32_b32", lane, "-1", "0")
    p.v("v_mbcnt_hi_u32_b32", lane, "-1", lane)
    p.v("v_lshrrev_b32", h_, I(5), lane)
    p.v("v_and_b32", vT2, I(15), lane)
    p.v("v_xor_b32", vT2, vT2, h_)
    p.v("v_lshlrev_b32", vT2, I(4), vT2)
    p.v("v_and_b32", vT1, I(31), lane)
    p.v("v_lshlrev_b32", vT1, I(10), vT1)
    p.v("v_add_u32", vT1, I(IMG), vT1)
    p.v("v_add_u32", vT1, f"s{sPAR}", vT1)
    for kk in range(8):
        p.v("v_xor_b32", vK + kk, I(kk << 5), vT2)
        p.v("v_add_u32", vK + kk, vK + kk, vT1)
    for kk in range(8):
        for i in range(4 * kk, 4 * kk + 4):
            p.v("v_mul_f32", ACC + 2 * i, vT0, ACC + 2 * i)
            p.v("v_mul_f32", ACC + 2 * i + 1, vT0, ACC + 2 * i + 1)
            p.v("v_cvt_pk_bf16_f32", OB + i, ACC + 2 * i, ACC + 2 * i + 1)
        p.ds_write128(vK + kk, OB + 4 * kk, 0)
    p.lgkm(0)
    p.barrier()
    stream_w(p, cbs, CLB, CFRG, ACC, XB, vXA, vm, wo_ops, 3, "wo", stamp=True)
    finish(p, ACC, 0, CLB[0], CLB[1], vK, vK + 1, vU0, vT0, None)
    if DBG:
        p.stamp()
        p.vmcnt(0)
        p.stamp()
        print("nstamps", p.ts, file=sys.stderr)
        p.ts = None
        p.s("s_memrealtime s[60:61]")
        p.s("s_waitcnt lgkmcnt(0)")
        p.s("s_sub_u32 s60, s60, s62")
        p.raw("    v_writelane_b32 v0, s60, 63")
        p.s(f"s_cmp_lg_u32 s{sWAVE}, 0")
        p.s("s_cbranch_scc1 L_exit")
        p.s("s_memrealtime s[60:61]")
        p.s("s_waitcnt lgkmcnt(0)")
        p.s("s_mov_b32 s68, s18")
        p.s("s_and_b32 s69, s19, 0xffff")
        p.s("s_mov_b32 s70, 0x4000000")
        p.s("s_mov_b32 s71, 0x00020000")
        p.raw("    v_mov_b32 v2, s66")
        p.raw("    v_mov_b32 v3, s62")
        p.raw("    v_mov_b32 v4, s60")
        p.raw("    v_mov_b32 v5, 0")
        p.s("s_lshl_b32 s72, s2, 4")
        p.s("s_add_u32 s72, s72, 0x2000000")
        p.raw("    v_mov_b32 v6, 0")
        p.raw("    buffer_store_dwordx4 v[2:5], v6, s[68:71], s72 offen")
        p.s(f"s_cmp_lg_u32 s2, {DBG-1}")
        p.s("s_cbranch_scc1 L_exit")
        srd(p, 64, 16, 17, 256)
        p.v("v_mbcnt_lo_u32_b32", 1, "-1", "0")
        p.v("v_mbcnt_hi_u32_b32", 1, "-1", 1)
        p.v("v_lshlrev_b32", 1, I(2), 1)
        p.raw("    buffer_store_dword v0, v1, s[64:67], 0 offen")
    if FUSE:
        p.s("s_branch L_tail")
    else:
        p.s("s_endpgm")


def gen_loader(p):
    p.label("L_kvload")
    vm = VM(p)
    L = 9
    p.v("v_and_b32", L, I(63), 0)
    p.v("v_lshrrev_b32", 11, I(4), L)
    p.v("v_and_b32", 12, I(15), L)
    p.v("v_lshlrev_b32", 13, I(8), 11)
    for j in range(4):
        p.v("v_add_u32", 14, I(4 * j), 11)
        p.v("v_xor_b32", 14, 14, 12)
        p.v("v_lshlrev_b32", 14, I(4), 14)
        p.v("v_add_u32", 1 + j, 14, 13)
    p.v("v_lshlrev_b32", 14, I(2), 11)
    p.v("v_xor_b32", 14, 14, 12)
    p.v("v_lshlrev_b32", 14, I(4), 14)
    p.v("v_add_u32", 5, 14, 13)
    p.s(f"s_add_u32 s{sROT}, s{sB}, s{sHKV}")
    p.s(f"s_and_b32 s{sT0}, s{sWAVE}, 3")
    p.s(f"s_lshl_b32 s{sPAR}, s{sT0}, 12")
    p.v("v_and_b32", 8, I(63), 0)
    p.v("v_lshlrev_b32", 9, I(4), 8)
    p.v("v_add_u32", 9, f"s{sPAR}", 9)
    p.v("v_add_u32", 10, I(65536), 9)
    add64(p, sK, f"s{sPAR}")
    p.s(f"s_sub_u32 s{sK+2}, s{sK+2}, s{sPAR}")
    add64(p, sV, f"s{sPAR}")
    p.s(f"s_sub_u32 s{sV+2}, s{sV+2}, s{sPAR}")
    if WARM:
        p.v("v_lshlrev_b32", 14, I(4), 8)
        p.s(f"s_lshl_b32 s{sT1}, s{sB}, 4")
        p.s(f"s_lshl_b32 s{sT2}, s{sT0}, 2")
        p.s(f"s_add_u32 s{sT1}, s{sT1}, s{sT2}")
        p.s(f"s_lshl_b32 s{sT2}, s{sT1}, 13")
        p.s(f"s_lshl_b32 s{sOFF}, s{sHKV}, 10")
        p.s(f"s_add_u32 s{sT2}, s{sT2}, s{sOFF}")
        for j in range(4):
            p.vload4(LLB[0] + 4 * j, 14, sWQ, f"s{sT2}", 0)
            vm.op()
            p.s(f"s_add_u32 s{sT2}, s{sT2}, 8192")
        p.s(f"s_lshl_b32 s{sT2}, s{sHKV}, 19")
        p.s(f"s_lshl_b32 s{sT1}, s{sT1}, 10")
        p.s(f"s_add_u32 s{sT2}, s{sT2}, s{sT1}")
        for j in range(4):
            p.vload4(LLB[0] + 16 + 4 * j, 14, sWO, f"s{sT2}", j * 1024)
            vm.op()
    p.s(f"s_lshl_b32 s{sT1}, s{sHKV}, 19")
    p.s(f"s_lshl_b32 s{sT2}, s{sT0}, 8")
    p.s(f"s_add_u32 s{sT1}, s{sT1}, s{sT2}")
    add64(p, sWO, f"s{sT1}")
    p.s(f"s_sub_u32 s{sWO+2}, s{sWO+2}, s{sT1}")
    setup_wo_addr(p, lWOA, 8, 14, 15)
    setup_img_addr(p, lXA, 8, 11, 15)

    def issue_tile(i, capu=None):
        kind, t = KVSEQ[i]
        p.s(f"s_add_u32 s{sOFF}, s{sROT}, {t}")
        p.s(f"s_and_b32 s{sOFF}, s{sOFF}, 7")
        p.s(f"s_lshl_b32 s{sOFF}, s{sOFF}, 14")
        if i < 8:
            p.m0(f"s_add_u32 m0, s{sPAR}, {i*SLOT}")
        for j in range(4):
            vo = 1 + j if kind == "K" else 5
            sr = sK if kind == "K" else sV
            if capu is not None:
                p.vmcnt(capu - 1)
            if i < 8:
                p.dma(vo, sr, f"s{sOFF}", j * 1024, KVMOD)
            else:
                p.vload4(LKV + 16 * (i - 8) + 4 * j, vo, sr, f"s{sOFF}", j * 1024, KVMOD)
            vm.op()
        vm.tag(("kv", i))

    lbs = list(range(NL))

    def wo_ops(n):
        ops = []
        for i in range(8):
            def f(i=i, n=n):
                if i == 0:
                    p.s(f"s_mov_b32 s{sOFF}, {lbs[n]*32768}")
                p.vload4(LLB[n % 4] + 4 * i, lWOA + (i >> 2), sWO, f"s{sOFF}", (i & 3) * 1024)
                vm.op()
            ops.append(f)
        return ops

    for i in range(NPRE):
        issue_tile(i)
    p.barrier()
    nxt = NPRE
    while nxt < NPRE + NTR:
        issue_tile(nxt, CAPU)
        nxt += 1
    if USE_BA:
        p.barrier()
    while nxt < min(16, NPRE + NTR + NB_A):
        issue_tile(nxt)
        nxt += 1
    vm.wait(("kv", 1))
    pf = {PF0: 0, PF0 + 1: 1, PF0 + 2: 2, 14: 3}
    for s in range(16):
        p.barrier()
        for _ in range(KVPS):
            if nxt < 16:
                issue_tile(nxt)
                nxt += 1
        i = s + 2
        if i < 16:
            vm.wait(("kv", i))
            if i >= 8:
                for j in range(4):
                    a = (i % 8) * SLOT + j * 1024
                    p.ds_write128(9 + a // 65536, LKV + 16 * (i - 8) + 4 * j, a % 65536)
                p.lgkm(0)
        if s in pf and pf[s] < NL:
            for f in wo_ops(pf[s]):
                f()
            vm.tag(("wo", pf[s]))
    p.barrier()
    stream_w(p, lbs, LLB, LFRG, LACC, LXB, lXA, vm, wo_ops, 4, "wo")
    finish(p, LACC, 1, LLB[0], LLB[1], 1, 2, 8, 3, None)
    if FUSE:
        gen_tail(p)
    else:
        p.s("s_endpgm")


def gen_main():
    p = Prog()
    p.raw(".text")
    p.raw(f".globl {NAME}_kernel")
    p.raw(".p2align 8")
    p.raw(f".type {NAME}_kernel,@function")
    p.label(f"{NAME}_kernel")
    p.s("s_cmp_ge_u32 s2, 256")
    p.s("s_cbranch_scc1 L_exit")
    p.s("s_load_dwordx16 s[4:19], s[0:1], 0")
    if DBG or TDBG:
        p.s("s_memrealtime s[66:67]")
    p.s(f"s_and_b32 s{sHKV}, s2, 7")
    p.s(f"s_lshr_b32 s{sB}, s2, 3")
    p.v("v_lshrrev_b32", 1, I(6), 0)
    p.rfl(f"s{sWAVE}", 1)
    p.s(f"s_mov_b32 s{sSEL0}, 0x05040100")
    p.s(f"s_mov_b32 s{sSEL1}, 0x07060302")
    p.s("s_waitcnt lgkmcnt(0)")
    srd(p, sX, 4, 5, 32768)
    srd(p, sK, 6, 7, 131072)
    srd(p, sV, 8, 9, 131072)
    srd(p, sWQ, 10, 11, 4194304)
    srd(p, sWO, 12, 13, 4194304)
    srd(p, sWS, 18, 19, 262144 if LIN else 32768)
    p.s(f"s_lshl_b32 s{sT0}, s{sB}, 15")
    add64(p, sX, f"s{sT0}")
    p.s(f"s_lshl_b32 s{sT0}, s2, 17")
    add64(p, sK, f"s{sT0}")
    add64(p, sV, f"s{sT0}")
    if LIN:
        p.s(f"s_lshl_b32 s{sT0}, s{sB}, 18")
    else:
        p.s(f"s_lshl_b32 s{sT0}, s{sHKV}, 5")
        p.s(f"s_add_u32 s{sT0}, s{sT0}, s{sB}")
        p.s(f"s_lshl_b32 s{sT0}, s{sT0}, 15")
    add64(p, sWS, f"s{sT0}")
    p.s(f"s_cmp_ge_u32 s{sWAVE}, 4")
    p.s("s_cbranch_scc1 L_kvload")
    gen_compute(p)
    gen_loader(p)
    p.label("L_exit")
    p.s("s_endpgm")
    return p


def gen_reduce():
    p = Prog()
    p.raw(".globl gqa_reduce_kernel")
    p.raw(".p2align 8")
    p.raw(".type gqa_reduce_kernel,@function")
    p.label("gqa_reduce_kernel")
    p.s("s_cmp_ge_u32 s2, 256")
    p.s("s_cbranch_scc1 L_rexit")
    p.s("s_load_dwordx2 s[4:5], s[0:1], 40")
    p.s("s_load_dwordx2 s[6:7], s[0:1], 56")
    if LIN:
        p.s("s_lshr_b32 s3, s2, 3")
        p.s("s_and_b32 s24, s2, 7")
        p.v("v_and_b32", 1, I(255), 0)
        p.v("v_and_b32", 2, I(63), 0)
        p.v("v_lshrrev_b32", 3, I(6), 1)
        p.v("v_lshlrev_b32", 1, I(4), 1)
        p.s("s_lshl_b32 s25, s3, 18")
        p.s("s_lshl_b32 s26, s24, 12")
        p.s("s_add_u32 s25, s25, s26")
        p.v("v_add_u32", 1, "s25", 1)
        p.v("v_and_b32", 4, I(15), 2)
        p.v("v_lshlrev_b32", 4, I(10), 4)
        p.v("v_lshrrev_b32", 5, I(4), 2)
        p.v("v_lshlrev_b32", 5, I(6), 5)
        p.v("v_lshlrev_b32", 3, I(4), 3)
        p.v("v_add3_u32", 4, 4, 5, 3)
        p.s("s_lshl_b32 s25, s3, 15")
        p.s("s_and_b32 s26, s24, 3")
        p.s("s_lshl_b32 s26, s26, 8")
        p.s("s_add_u32 s25, s25, s26")
        p.s("s_lshr_b32 s26, s24, 2")
        p.s("s_lshl_b32 s26, s26, 14")
        p.s("s_add_u32 s25, s25, s26")
        p.v("v_add_u32", 4, "s25", 4)
    else:
        p.s("s_lshl_b32 s3, s2, 12")
        p.v("v_and_b32", 1, I(255), 0)
        p.v("v_lshlrev_b32", 1, I(4), 1)
        p.v("v_add_u32", 1, "s3", 1)
        p.v("v_mov_b32", 4, 1)
    p.s("s_waitcnt lgkmcnt(0)")
    srd(p, 8, 4, 5, 1048576)
    srd(p, 12, 6, 7, 8388608)
    for hk in range(8):
        p.s(f"s_mov_b32 s{16+hk}, {hk*(32768 if LIN else 1048576)}")
    for hk in range(8):
        p.vload4(8 + 4 * hk, 1, 12, f"s{16+hk}", 0)
    for hk in range(8):
        p.vmcnt(7 - hk)
        for e in range(4):
            src = 8 + 4 * hk + e
            if hk == 0:
                p.v("v_lshlrev_b32", 40 + 2 * e, I(16), src)
                p.v("v_and_b32", 41 + 2 * e, "0xffff0000", src)
            else:
                p.v("v_lshlrev_b32", 48, I(16), src)
                p.v("v_and_b32", 49, "0xffff0000", src)
                p.v("v_add_f32", 40 + 2 * e, 40 + 2 * e, 48)
                p.v("v_add_f32", 41 + 2 * e, 41 + 2 * e, 49)
    for e in range(4):
        p.v("v_cvt_pk_bf16_f32", 50 + e, 40 + 2 * e, 41 + 2 * e)
    p.vstore4(50, 4, 8, "0", 0)
    p.label("L_rexit")
    p.s("s_endpgm")
    return p


def kd(name, vgpr):
    return f""".amdhsa_kernel {name}
  .amdhsa_next_free_vgpr {vgpr}
  .amdhsa_next_free_sgpr 102
  .amdhsa_accum_offset {vgpr}
  .amdhsa_group_segment_fixed_size 0
  .amdhsa_kernarg_size 64
  .amdhsa_user_sgpr_count 2
  .amdhsa_user_sgpr_kernarg_segment_ptr 1
  .amdhsa_system_sgpr_workgroup_id_x 1
.end_amdhsa_kernel
"""


def main():
    m = gen_main()
    r = gen_reduce()
    txt = HEADER
    if FUSE:
        txt += f"; @launch grid=(256,1,1) block=(512,1,1) lds={LDS_BYTES}\n"
    else:
        txt += f"; @launch kernel={NAME}_kernel grid=(256,1,1) block=(512,1,1) lds={LDS_BYTES}\n"
        txt += "; @launch kernel=gqa_reduce_kernel grid=(256,1,1) block=(256,1,1) lds=0\n"
    txt += '.amdgcn_target "amdgcn-amd-amdhsa--gfx950"\n'
    txt += "\n".join(m.lines) + "\n"
    if not FUSE:
        txt += "\n".join(r.lines) + "\n"
    txt += '.section .rodata,"a"\n.p2align 6\n'
    txt += kd(f"{NAME}_kernel", 256)
    if not FUSE:
        txt += ".p2align 6\n"
        txt += kd("gqa_reduce_kernel", 56)
    open(OUT, "w").write(txt)
    print("wrote", OUT, len(txt), "bytes", len(m.lines), "lines")


main()
```
